```python
import torch

def _softmax(x, axis=-1):
    return torch.softmax(x, dim=axis)
def _gelu(x):
    return torch.nn.functional.gelu(x, approximate="tanh")
def _silu(x):
    return torch.nn.functional.silu(x)
def _sigmoid(x):
    return torch.sigmoid(x)
def _layernorm(x, axis=-1, eps=1e-5):
    m = x.mean(dim=axis, keepdim=True)
    v = x.var(dim=axis, keepdim=True, unbiased=False)
    return (x - m) / torch.sqrt(v + eps)
def _scatter_add(tgt, idx, src, axis=0):
    return tgt.clone().index_add_(axis, idx, src)
def _segment_sum(src, seg, n):
    out = torch.zeros((n,) + src.shape[1:], dtype=src.dtype)
    return out.index_add_(0, seg, src)
def _pad(x, pw):
    flat = tuple(v for pair in reversed(pw) for v in pair)
    return torch.nn.functional.pad(x, flat)

kernel_name = 'concat_heads__gqa_block_cached__gqa_block_cached__near_ridge'

def setup_inputs():

    _w = (lambda a: (lambda t: t.to(torch.bfloat16) if t.is_floating_point() else t)(torch.as_tensor(a)))
    def _A_setup():
        B, Sq, D = 16, 32, 640
        Hq, Hkv, Sk, Dh = 32, 32, 32, 192
        assert Hq % Hkv == 0, (Hq, Hkv)
        return {
            "x": _w((lambda *s: torch.randn(*s, dtype=torch.bfloat16) * 0.8)(B, Sq, D)),
            "k_cache": _w((lambda *s: torch.randn(*s, dtype=torch.bfloat16) * 0.8)(B, Hkv, Sk, Dh)),
            "v_cache": _w((lambda *s: torch.randn(*s, dtype=torch.bfloat16) * 0.05)(B, Hkv, Sk, Dh)),
            "wq": _w((lambda *s: torch.randn(*s, dtype=torch.bfloat16) * 0.8)(D, Hq * Dh) * (D ** -0.5)),
            "wo": _w((lambda *s: torch.randn(*s, dtype=torch.bfloat16) * 0.05)(Hq * Dh, D) * ((Hq * Dh) ** -0.5)),
        }
    _A_in = _A_setup()

    def _B_setup():
        B, Sq, D = 16, 32, 640
        Hq, Hkv, Sk, Dh = 32, 32, 32, 192
        assert Hq % Hkv == 0, (Hq, Hkv)
        return {
            "x": _w((lambda *s: torch.randn(*s, dtype=torch.bfloat16) * 0.8)(B, Sq, D)),
            "k_cache": _w((lambda *s: torch.randn(*s, dtype=torch.bfloat16) * 0.8)(B, Hkv, Sk, Dh)),
            "v_cache": _w((lambda *s: torch.randn(*s, dtype=torch.bfloat16) * 0.05)(B, Hkv, Sk, Dh)),
            "wq": _w((lambda *s: torch.randn(*s, dtype=torch.bfloat16) * 0.8)(D, Hq * Dh) * (D ** -0.5)),
            "wo": _w((lambda *s: torch.randn(*s, dtype=torch.bfloat16) * 0.05)(Hq * Dh, D) * ((Hq * Dh) ** -0.5)),
        }
    _B_in = _B_setup()

    return {
        "A_x": _A_in["x"],
        "A_k_cache": _A_in["k_cache"],
        "A_v_cache": _A_in["v_cache"],
        "A_wq": _A_in["wq"],
        "A_wo": _A_in["wo"],
        "B_x": _B_in["x"],
        "B_k_cache": _B_in["k_cache"],
        "B_v_cache": _B_in["v_cache"],
        "B_wq": _B_in["wq"],
        "B_wo": _B_in["wo"],
    }

def reference(A_x, A_k_cache, A_v_cache, A_wq, A_wo, B_x, B_k_cache, B_v_cache, B_wq, B_wo):
    def _A_ref(x, k_cache, v_cache, wq, wo):
        B, Sq, D = x.shape
        Hq, Dh = 32, 192
        Hkv = k_cache.shape[1]
        rep = Hq // Hkv
        q = (lambda x, *d: x.permute(*d))((x @ wq).reshape(B, Sq, Hq, Dh), 0, 2, 1, 3)
        k = (lambda x, n, axis: torch.repeat_interleave(x, n, dim=axis))(k_cache, rep, axis=1)
        v = (lambda x, n, axis: torch.repeat_interleave(x, n, dim=axis))(v_cache, rep, axis=1)
        scores = torch.einsum("bhqd,bhkd->bhqk", q, k) * (Dh ** -0.5)
        p = _softmax(scores, axis=-1)
        o = torch.einsum("bhqk,bhkd->bhqd", p, v)
        return (lambda x, *d: x.permute(*d))(o, 0, 2, 1, 3).reshape(B, Sq, Hq * Dh) @ wo

    def _B_ref(x, k_cache, v_cache, wq, wo):
        B, Sq, D = x.shape
        Hq, Dh = 32, 192
        Hkv = k_cache.shape[1]
        rep = Hq // Hkv
        q = (lambda x, *d: x.permute(*d))((x @ wq).reshape(B, Sq, Hq, Dh), 0, 2, 1, 3)
        k = (lambda x, n, axis: torch.repeat_interleave(x, n, dim=axis))(k_cache, rep, axis=1)
        v = (lambda x, n, axis: torch.repeat_interleave(x, n, dim=axis))(v_cache, rep, axis=1)
        scores = torch.einsum("bhqd,bhkd->bhqk", q, k) * (Dh ** -0.5)
        p = _softmax(scores, axis=-1)
        o = torch.einsum("bhqk,bhkd->bhqd", p, v)
        return (lambda x, *d: x.permute(*d))(o, 0, 2, 1, 3).reshape(B, Sq, Hq * Dh) @ wo

    a = _A_ref(A_x, A_k_cache, A_v_cache, A_wq, A_wo)
    b = _B_ref(B_x, B_k_cache, B_v_cache, B_wq, B_wo)
    return torch.concatenate([a, b], axis=-1)
```

```python
class Asm:
    def __init__(self):
        self.l = []
        self.q = []
    def __call__(self, s):
        for x in s.split("\n"):
            x = x.strip()
            if x: self.l.append(("" if x.endswith(":") else "  ") + x)
    def c(self, s): self.l.append("  ; " + s)
    def text(self): return "\n".join(self.l) + "\n"
    def ds(self, ins, regs):
        self(ins)
        self.q.append(set(regs))
        assert len(self.q) <= 15, "too many outstanding lgkm"
    def need(self, regs):
        regs = set(regs)
        last = -1
        for i, s in enumerate(self.q):
            if s & regs: last = i
        if last >= 0:
            n = len(self.q) - 1 - last
            self(f"s_waitcnt lgkmcnt({n})")
            self.q = self.q[last+1:]
    def drain(self):
        self("s_waitcnt lgkmcnt(0)")
        self.q = []
def R(a, n): return list(range(a, a+n))
def vr(a, n=1): return f"v{a}" if n == 1 else f"v[{a}:{a+n-1}]"
def sr(a, n=1): return f"s{a}" if n == 1 else f"s[{a}:{a+n-1}]"
```

```python
import sys, argparse
sys.path.insert(0, "gen")
from asmlib import *

NAME = "concat_heads__gqa_block_cached__gqa_block_cached__near_ridge"
SLOT = 40960
NSLOT = 4
LDS = SLOT * NSLOT
WS_P = 0
WS_PART = 0x200000
WS_BYTES = 268435456

S_W8 = 3
SRD_X, SRD_WQ, SRD_K, SRD_V, SRD_WO, SRD_OUT, SRD_WS, SRD_DBG = 4, 8, 12, 16, 20, 24, 28, 32
S_P, S_BG, S_H, S_HG, S_NT, S_W, S_OWN, S_HH = 36, 37, 38, 39, 40, 41, 42, 43
S_T0, S_T1, S_T2, S_T3 = 44, 45, 46, 47
S_C, S_BX, S_BW, S_SX, S_SW = 48, 49, 50, 51, 52
S_M4, S_M6, S_MO, S_MP = 53, 54, 55, 56
S_BKV, S_SV, S_SO, S_SP, S_CF, S_CP, S_HI = 57, 58, 59, 60, 61, 62, 63
S_SLOT, S_DELTA, S_CNT, S_PS = 64, 65, 66, 67
S_SC = 68
S_KSLOT = 69

class Cfg:
    def __init__(s, **kw):
        s.mode = "multi"; s.pol = "nt"; s.rot = 0; s.bar1 = 1; s.bar2 = 1; s.stamp = 0
        s.__dict__.update(kw)

def prologue(a, cfg):
    a("s_cmp_ge_u32 s2, 256")
    a("s_cbranch_scc1 L_exit_%s" % a.tag)
    a("s_and_b32 s%d, s2, 7" % S_T0)
    a("s_lshr_b32 s%d, s%d, 2" % (S_P, S_T0))
    a("s_mul_i32 s%d, s%d, 40" % (S_T1, S_P))
    a("s_load_dwordx8 s[72:79], s[0:1], s%d" % S_T1)
    a("s_load_dwordx2 s[80:81], s[0:1], s%d offset:32" % S_T1)
    a("s_load_dwordx4 s[84:87], s[0:1], 80")
    a("s_load_dwordx2 s[88:89], s[0:1], 96")
    a("v_lshrrev_b32 v1, 6, v0")
    a("v_and_b32 v0, 63, v0")
    a("s_and_b32 s%d, s%d, 3" % (S_T0, S_T0))
    a("v_readfirstlane_b32 s%d, v1" % S_W8)
    a("s_lshr_b32 s%d, s2, 3" % S_T1)
    a("s_and_b32 s%d, s%d, 3" % (S_BG, S_T1))
    a("s_lshr_b32 s%d, s%d, 2" % (S_HH, S_T1))
    a("s_lshl_b32 s%d, s%d, 3" % (S_H, S_T0))
    a("s_add_u32 s%d, s%d, s%d" % (S_H, S_H, S_HH))
    a("s_lshr_b32 s%d, s%d, 2" % (S_HG, S_H))
    a("s_and_b32 s%d, s%d, 3" % (S_OWN, S_HH))
    a("s_sub_u32 s%d, s%d, s%d" % (S_NT, S_OWN, S_BG))
    a("s_and_b32 s%d, s%d, 3" % (S_NT, S_NT))
    a("s_and_b32 s%d, s%d, 3" % (S_W, S_W8))
    a("s_waitcnt lgkmcnt(0)")
    for srd, ptr, nb in ((SRD_X, 72, 655360), (SRD_K, 74, 6291456), (SRD_V, 76, 6291456), (SRD_WQ, 78, 7864320),
                         (SRD_WO, 80, 7864320), (SRD_OUT, 84, 1310720), (SRD_DBG, 86, 256), (SRD_WS, 88, WS_BYTES)):
        a("s_mov_b32 s%d, s%d" % (srd, ptr))
        a("s_mov_b32 s%d, s%d" % (srd+1, ptr+1))
        a("s_mov_b32 s%d, %d" % (srd+2, nb))
        a("s_mov_b32 s%d, 0x00020000" % (srd+3))

VL_X, VL_V, VL_W, VL_O, VL_P = 8, 12, 16, 18, 20
def loader_setup(a, cfg):
    a.c("loader: per-lane source offsets")
    a("v_lshrrev_b32 v1, 3, v0")
    a("v_and_b32 v2, 7, v0")
    a("v_lshrrev_b32 v3, 1, v1")
    a("v_xor_b32 v4, v2, v3")
    a("v_xor_b32 v5, 4, v4")
    a("v_lshlrev_b32 v4, 4, v4")
    a("v_lshlrev_b32 v5, 4, v5")
    a("v_mul_u32_u24 v6, 1280, v1")
    a("v_mul_u32_u24 v7, 384, v1")
    for i in range(4):
        a("v_add_u32 v%d, v6, v%d" % (VL_X+i, 4 + (i & 1)))
        a("v_add_u32 v%d, v7, v%d" % (VL_V+i, 4 + (i & 1)))
        if i:
            a("v_add_u32 v%d, %d, v%d" % (VL_X+i, 8*i*1280, VL_X+i))
            a("v_add_u32 v%d, %d, v%d" % (VL_V+i, 8*i*384, VL_V+i))
    a("v_and_b32 v3, 1, v3")
    a("v_lshlrev_b32 v3, 2, v3")
    a("v_xor_b32 v3, v2, v3")
    a("v_lshlrev_b32 v3, 4, v3")
    a("v_mul_u32_u24 v7, 12288, v1")
    a("v_add_u32 v%d, v7, v3" % VL_W)
    a("v_add_u32 v%d, %d, v%d" % (VL_W+1, 8*12288, VL_W))
    a("v_add_u32 v%d, v6, v3" % VL_O)
    a("v_add_u32 v%d, %d, v%d" % (VL_O+1, 8*1280, VL_O))
    a("v_lshrrev_b32 v1, 2, v0")
    a("v_and_b32 v2, 3, v0")
    a("v_mul_u32_u24 v1, 1280, v1")
    a("v_lshlrev_b32 v2, 4, v2")
    a("v_add_u32 v%d, v1, v2" % VL_P)
    a("s_lshl_b32 s%d, s%d, 12" % (S_M4, S_W))
    a("s_mul_i32 s%d, s%d, 6144" % (S_M6, S_W))
    a("s_lshl_b32 s%d, s%d, 10" % (S_MP, S_W))
    a("s_lshl_b32 s%d, s%d, 2" % (S_T0, S_BG))
    a("s_add_u32 s%d, s%d, s%d" % (S_T0, S_T0, S_W))
    a("s_mul_i32 s%d, s%d, %d" % (S_BX, S_T0, 32*1280))
    a("s_mul_i32 s%d, s%d, %d" % (S_BKV, S_T0, 32*12288))
    a("s_mul_i32 s%d, s%d, %d" % (S_BW, S_W, 16*12288))
    a("s_mul_i32 s%d, s%d, 384" % (S_T0, S_H))
    a("s_add_u32 s%d, s%d, s%d" % (S_BW, S_BW, S_T0))
    if cfg.rot:
        a("s_lshl_b32 s%d, s%d, 1" % (S_C, S_BG))
        a("s_add_u32 s%d, s%d, s%d" % (S_C, S_C, S_HH))
        a("s_mul_i32 s%d, s%d, 5" % (S_C, S_C))
        a("s_lshr_b32 s%d, s%d, 2" % (S_C, S_C))
        a("s_sub_u32 s%d, s%d, 10" % (S_T0, S_C))
        a("s_cmp_ge_u32 s%d, 10" % S_C)
        a("s_cselect_b32 s%d, s%d, s%d" % (S_C, S_T0, S_C))
    else:
        a("s_mov_b32 s%d, 0" % S_C)
    a("s_mul_i32 s%d, s%d, 320" % (S_T0, S_NT))
    a("s_and_b32 s%d, s%d, 1" % (S_T1, S_NT))
    a("s_lshl_b32 s%d, s%d, 6" % (S_T2, S_T1))
    a("s_add_u32 s%d, s%d, s%d" % (S_CF, S_T0, S_T2))
    a("s_xor_b32 s%d, s%d, 1" % (S_T1, S_T1))
    a("s_lshl_b32 s%d, s%d, 8" % (S_T2, S_T1))
    a("s_add_u32 s%d, s%d, s%d" % (S_CP, S_T0, S_T2))
    a("s_mul_i32 s%d, s%d, %d" % (S_T0, S_W, 16*1280))
    a("s_add_u32 s%d, s%d, s%d" % (S_CF, S_CF, S_T0))
    a("s_add_u32 s%d, s%d, s%d" % (S_CP, S_CP, S_T0))

def dma(a, cfg, mbase, mconst, voff, srd, soff, imm=0):
    assert mconst - imm >= 0
    a("s_add_u32 m0, s%d, %d" % (mbase, mconst - imm))
    a("s_nop 0")
    a("buffer_load_dwordx4 v%d, s[%d:%d], s%d offen %s%s lds" % (voff, srd, srd+3, soff, ("offset:%d " % imm) if imm else "", cfg.pol))

def stage_count(st): return {"p1": 10, "ka": 8, "kb": 4, "p2": 9}[st[0]]

def loader_issue(a, cfg, st, slot):
    base = slot * SLOT
    if st[0] == "p1":
        a("s_lshl_b32 s%d, s%d, 7" % (S_SX, S_C))
        a("s_add_u32 s%d, s%d, s%d" % (S_SX, S_SX, S_BX))
        a("s_mul_i32 s%d, s%d, %d" % (S_SW, S_C, 64*12288))
        a("s_add_u32 s%d, s%d, s%d" % (S_SW, S_SW, S_BW))
        for b in range(2):
            for j in range(3):
                dma(a, cfg, S_M6, base + 16384 + b*3072 + j*1024, VL_W+b, SRD_WQ, S_SW, j*128)
        for i in range(4):
            dma(a, cfg, S_M4, base + i*1024, VL_X+i, SRD_X, S_SX)
        a("s_add_u32 s%d, s%d, 1" % (S_C, S_C))
        a("s_cmp_eq_u32 s%d, 10" % S_C)
        a("s_cselect_b32 s%d, 0, s%d" % (S_C, S_C))
    elif st[0] in ("ka", "kb"):
        a("s_mul_i32 s%d, s%d, 12288" % (S_SV, S_H))
        a("s_add_u32 s%d, s%d, s%d" % (S_SV, S_SV, S_BKV))
        for n, c in enumerate((0, 1) if st[0] == "ka" else (2,)):
            for i in range(4):
                dma(a, cfg, S_M4, base + n*16384 + i*1024, VL_V+i, SRD_K, S_SV, c*128)
    else:
        _, hi, c = st
        if c == 0:
            if cfg.rot:
                a("s_add_u32 s%d, s%d, %d" % (S_HI, S_OWN, hi))
                a("s_and_b32 s%d, s%d, 3" % (S_HI, S_HI))
            else:
                a("s_mov_b32 s%d, %d" % (S_HI, hi))
            a("s_lshl_b32 s%d, s%d, 2" % (S_T0, S_HG))
            a("s_add_u32 s%d, s%d, s%d" % (S_HI, S_HI, S_T0))
            a("s_mul_i32 s%d, s%d, 12288" % (S_SV, S_HI))
            a("s_add_u32 s%d, s%d, s%d" % (S_SV, S_SV, S_BKV))
            a("s_mul_i32 s%d, s%d, %d" % (S_T0, S_HI, 192*1280))
            a("s_add_u32 s%d, s%d, s%d" % (S_SO, S_T0, S_CF))
            a("s_add_u32 s%d, s%d, s%d" % (S_SP, S_T0, S_CP))
        else:
            a("s_add_u32 s%d, s%d, %d" % (S_SO, S_SO, 64*1280))
            a("s_add_u32 s%d, s%d, %d" % (S_SP, S_SP, 64*1280))
            a("s_add_u32 s%d, s%d, 128" % (S_SV, S_SV))
        for b in range(2):
            for j in range(2):
                dma(a, cfg, S_M4, base + 16384 + b*2048 + j*1024, VL_O+b, SRD_WO, S_SO, j*128)
        dma(a, cfg, S_MP, base + 32768, VL_P, SRD_WO, S_SP)
        for i in range(4):
            dma(a, cfg, S_M4, base + i*1024, VL_V+i, SRD_V, S_SV)

def loader_run(a, cfg, stages, extra_barriers):
    n = len(stages)
    issued = 0
    for s in range(min(NSLOT, n)):
        loader_issue(a, cfg, stages[s], s % NSLOT); issued += 1
    for s in range(n):
        cnt = sum(stage_count(stages[k]) for k in range(s+1, issued))
        a("s_waitcnt vmcnt(%d)" % cnt)
        a("s_barrier")
        if s >= 1 and issued < n:
            assert issued == s + NSLOT - 1
            loader_issue(a, cfg, stages[issued], issued % NSLOT); issued += 1
    for _ in range(extra_barriers):
        a("s_barrier")

V_AX = 2
V_AE, V_AO, V_A4 = 6, 7, 8
V_L16 = 9
V_T = 10
V_B = 16
V_A = 24
V_P = 48
V_K = 56
V_S = 104
V_Q = 160
V_VW = 64
V_OUT = 160

def compute_setup(a, cfg):
    a.c("compute: LDS read addresses")
    a("v_and_b32 v10, 31, v0")
    a("v_lshrrev_b32 v11, 5, v0")
    a("v_lshrrev_b32 v12, 1, v10")
    a("v_and_b32 v12, 7, v12")
    a("v_xor_b32 v12, v12, v11")
    a("v_lshlrev_b32 v12, 4, v12")
    a("v_lshl_add_u32 v12, v10, 7, v12")
    a("s_lshl_b32 s%d, s%d, 12" % (S_T0, S_W))
    a("v_add_u32 v%d, s%d, v12" % (V_AX, S_T0))
    for s in range(1, 4):
        a("v_xor_b32 v%d, %d, v%d" % (V_AX+s, 32*s, V_AX))
    a("v_lshlrev_b32 v%d, 4, v0" % V_L16)
    a("s_mov_b32 s%d, %d" % (S_KSLOT, SLOT))

def compute_tr_addr(a, phase, slot_sgpr=None):
    a("v_bfe_u32 v10, v0, 2, 2")
    a("v_bfe_u32 v11, v0, 4, 1")
    a("v_lshrrev_b32 v12, 5, v0")
    a("v_and_b32 v13, 1, v0")
    a("v_bfe_u32 v14, v0, 1, 1")
    a("v_lshl_add_u32 v13, v13, 1, v14")
    a("v_lshlrev_b32 v13, 3, v13")
    a("v_lshl_add_u32 v13, v11, 5, v13")
    a("v_lshrrev_b32 v14, 1, v10")
    a("v_mul_u32_u24 v15, %d, v12" % (3072 if phase == 1 else 2048))
    a("v_lshl_add_u32 v15, v10, 7, v15")
    a("v_add_u32 v15, v15, v13")
    a("v_add_u32 v15, 16384, v15")
    a("v_lshl_add_u32 v%d, v14, 6, v15" % V_AE)
    a("v_xor_b32 v%d, 64, v%d" % (V_AO, V_AE))
    if phase == 2:
        a("v_lshlrev_b32 v15, 9, v12")
        a("v_lshl_add_u32 v15, v10, 6, v15")
        a("v_add_u32 v15, v15, v13")
        a("v_add_u32 v%d, 32768, v15" % V_A4)
    if slot_sgpr is not None:
        for r in (V_AE, V_AO) + ((V_A4,) if phase == 2 else ()):
            a("v_add_u32 v%d, s%d, v%d" % (r, slot_sgpr, r))

def advance_slot(a, phase):
    a("s_add_u32 s%d, s%d, %d" % (S_SLOT, S_SLOT, SLOT))
    a("s_cmp_eq_u32 s%d, %d" % (S_SLOT, LDS))
    a("s_cselect_b32 s%d, 0, s%d" % (S_SLOT, S_SLOT))
    a("s_cselect_b32 s%d, %d, s%d" % (S_DELTA, SLOT - LDS, S_KSLOT))
    for r in list(range(V_AX, V_AX+4)) + [V_AE, V_AO] + ([V_A4] if phase == 2 else []):
        a("v_add_u32 v%d, s%d, v%d" % (r, S_DELTA, r))

def rd_b(a, s, off=0, dst=None):
    d = V_B + 4*(s & 1) if dst is None else dst
    a.ds("ds_read_b128 %s, v%d offset:%d" % (vr(d, 4), V_AX+s, off), R(d, 4))
def rd_a(a, phase, s, t):
    d = V_A + 4*t
    for jj in range(2):
        if phase == 1:
            ad, off = (V_AE, V_AO)[t & 1], s*6144 + (t >> 1)*1024 + jj*512
        elif t < 4:
            ad, off = (V_AE, V_AO)[t & 1], s*4096 + (t >> 1)*1024 + jj*512
        else:
            ad, off = V_A4, s*1024 + jj*256
        a.ds("ds_read_b64_tr_b16 %s, v%d offset:%d" % (vr(d+2*jj, 2), ad, off), R(d+2*jj, 2))
def mfma(a, d, x, y, c):
    a("v_mfma_f32_32x32x16_bf16 %s, %s, %s, %s" % (vr(d, 16), vr(x, 4), vr(y, 4), c if isinstance(c, str) else vr(c, 16)))

def first_reads(a, phase):
    rd_b(a, 0)
    for t in range(6 if phase == 1 else 5): rd_a(a, phase, 0, t)

def gemm_stage(a, cfg, phase, zero_first=False, tail=None):
    nt = 6 if phase == 1 else 5
    bar = cfg.bar1 if phase == 1 else cfg.bar2
    for s in range(4):
        b = V_B + 4*(s & 1)
        for t in range(nt):
            a.need(R(V_A+4*t, 4) + R(b, 4))
            if phase == 1:
                mfma(a, V_Q+16*t, V_A+4*t, b, V_Q+16*t)
            else:
                mfma(a, V_VW+16*t, b, V_A+4*t, "0" if (zero_first and s == 0) else V_VW+16*t)
            if s < 3:
                if t == 0: rd_b(a, s+1)
                rd_a(a, phase, s+1, t)
            else:
                if t == bar:
                    a.drain()
                    a("s_barrier")
                    advance_slot(a, phase)
                    if tail is None:
                        rd_b(a, 0)
                        for tt in range(bar+1): rd_a(a, phase, 0, tt)
                if tail is not None:
                    if t >= bar: tail(t)
                elif t > bar:
                    rd_a(a, phase, 0, t)

def compute_phase1(a, cfg):
    compute_tr_addr(a, 1)
    for r in range(V_Q, V_Q+96): a("v_mov_b32 v%d, 0" % r)
    a("s_mov_b32 s%d, 0" % S_SLOT)
    a("s_mov_b32 s%d, 9" % S_CNT)
    a("s_barrier")
    first_reads(a, 1)
    q0 = list(a.q)
    a("L_p1_%s:" % a.tag)
    gemm_stage(a, cfg, 1)
    assert a.q == q0, (a.q, q0)
    a("s_sub_u32 s%d, s%d, 1" % (S_CNT, S_CNT))
    a("s_cmp_lg_u32 s%d, 0" % S_CNT)
    a("s_cbranch_scc1 L_p1_%s" % a.tag)
    def ktail(t):
        if t == cfg.bar1:
            for f in range(8):
                rd_b(a, f & 3, (f >> 2)*16384, V_K + 4*f)
    gemm_stage(a, cfg, 1, tail=ktail)
    a.drain()
    a("s_barrier")
    advance_slot(a, 1)
    for f in range(8, 12): rd_b(a, f & 3, 0, V_K + 4*f)
    def cvt_tile(base):
        for j in range(8): a("v_cvt_pk_bf16_f32 v%d, v%d, v%d" % (base+j, base+2*j, base+2*j+1))
    cvt_tile(V_Q)
    for t in range(6):
        if t < 5: cvt_tile(V_Q + 16*(t+1))
        else: a("s_nop 1")
        for u in range(2):
            f = 2*t + u
            a.need(R(V_K+4*f, 4))
            mfma(a, V_S, V_K+4*f, V_Q+16*t+4*u, "0" if f == 0 else V_S)

def softmax_store(a, cfg):
    S = V_S
    a("s_mov_b32 s%d, 0x3dd53b95" % S_SC)
    a("s_nop 10")
    a("v_max3_f32 v10, v%d, v%d, v%d" % (S, S+1, S+2))
    for i in range(3, 15, 2): a("v_max3_f32 v10, v10, v%d, v%d" % (S+i, S+i+1))
    a("v_max_f32 v10, v10, v%d" % (S+15))
    a("v_mov_b32 v11, v10")
    a("s_nop 1")
    a("v_permlane32_swap_b32 v10, v11")
    a("v_max_f32 v10, v10, v11")
    a("v_mul_f32 v10, s%d, v10" % S_SC)
    for i in range(16): a("v_fma_f32 v%d, v%d, s%d, -v10" % (S+i, S+i, S_SC))
    for i in range(16): a("v_exp_f32 v%d, v%d" % (S+i, S+i))
    a("v_add_f32 v10, v%d, v%d" % (S, S+1))
    a("v_add_f32 v11, v%d, v%d" % (S+2, S+3))
    for i in range(4, 16, 2):
        a("v_add_f32 v10, v10, v%d" % (S+i))
        a("v_add_f32 v11, v11, v%d" % (S+i+1))
    a("v_add_f32 v10, v10, v11")
    a("v_mov_b32 v11, v10")
    a("s_nop 1")
    a("v_permlane32_swap_b32 v10, v11")
    a("v_add_f32 v10, v10, v11")
    a("v_rcp_f32 v10, v10")
    a("s_nop 0")
    for i in range(16): a("v_mul_f32 v%d, v%d, v10" % (S+i, S+i))
    for j in range(8): a("v_cvt_pk_bf16_f32 v%d, v%d, v%d" % (V_P+j, S+2*j, S+2*j+1))
    unit_off(a, S_PS, S_H)
    pol = "sc1" if cfg.mode == "fused" else ""
    a("buffer_store_dwordx4 %s, v%d, s[%d:%d], s%d offen %s" % (vr(V_P, 4), V_L16, SRD_WS, SRD_WS+3, S_PS, pol))
    a("buffer_store_dwordx4 %s, v%d, s[%d:%d], s%d offen offset:1024 %s" % (vr(V_P+4, 4), V_L16, SRD_WS, SRD_WS+3, S_PS, pol))

def unit_off(a, dst, hreg):
    a("s_lshl_b32 s%d, s%d, 2" % (S_T0, S_P))
    a("s_add_u32 s%d, s%d, s%d" % (S_T0, S_T0, S_BG))
    a("s_lshl_b32 s%d, s%d, 2" % (S_T0, S_T0))
    a("s_add_u32 s%d, s%d, s%d" % (S_T0, S_T0, S_W))
    a("s_lshl_b32 s%d, s%d, 5" % (S_T0, S_T0))
    a("s_add_u32 s%d, s%d, s%d" % (S_T0, S_T0, hreg))
    a("s_lshl_b32 s%d, s%d, 11" % (dst, S_T0))
    if WS_P: a("s_add_u32 s%d, s%d, %d" % (dst, dst, WS_P))

def compute_phase2(a, cfg):
    for r in range(V_OUT, V_OUT+80): a("v_mov_b32 v%d, 0" % r)
    a("s_mov_b32 s%d, 0" % S_CNT)
    a("s_barrier")
    first_reads(a, 2)
    q0 = list(a.q)
    a("L_p2_%s:" % a.tag)
    if cfg.rot:
        a("s_add_u32 s%d, s%d, s%d" % (S_HI, S_OWN, S_CNT))
        a("s_and_b32 s%d, s%d, 3" % (S_HI, S_HI))
    else:
        a("s_mov_b32 s%d, s%d" % (S_HI, S_CNT))
    a("s_lshl_b32 s%d, s%d, 2" % (S_T1, S_HG))
    a("s_add_u32 s%d, s%d, s%d" % (S_HI, S_HI, S_T1))
    unit_off(a, S_PS, S_HI)
    a("buffer_load_dwordx4 %s, v%d, s[%d:%d], s%d offen" % (vr(V_P, 4), V_L16, SRD_WS, SRD_WS+3, S_PS))
    a("buffer_load_dwordx4 %s, v%d, s[%d:%d], s%d offen offset:1024" % (vr(V_P+4, 4), V_L16, SRD_WS, SRD_WS+3, S_PS))
    for c in range(3):
        gemm_stage(a, cfg, 2, zero_first=(c == 0))
    head_epilogue(a)
    assert a.q == q0, (a.q, q0)
    a("s_add_u32 s%d, s%d, 1" % (S_CNT, S_CNT))
    a("s_cmp_lg_u32 s%d, 4" % S_CNT)
    a("s_cbranch_scc1 L_p2_%s" % a.tag)

def head_epilogue(a):
    def cvt_tile(base):
        for j in range(8): a("v_cvt_pk_bf16_f32 v%d, v%d, v%d" % (base+j, base+2*j, base+2*j+1))
    cvt_tile(V_VW)
    a("s_waitcnt vmcnt(0)")
    for t in range(5):
        if t < 4: cvt_tile(V_VW + 16*(t+1))
        for u in range(2):
            mfma(a, V_OUT+16*t, V_VW+16*t+4*u, V_P+4*u, V_OUT+16*t)

def store_partials(a, cfg):
    a("s_lshl_b32 s%d, s%d, 2" % (S_T0, S_P))
    a("s_add_u32 s%d, s%d, s%d" % (S_T0, S_T0, S_BG))
    a("s_lshl_b32 s%d, s%d, 2" % (S_T0, S_T0))
    a("s_add_u32 s%d, s%d, s%d" % (S_T0, S_T0, S_NT))
    a("s_mul_i32 s%d, s%d, 327680" % (S_T0, S_T0))
    a("s_mul_i32 s%d, s%d, 5120" % (S_T1, S_HG))
    a("s_add_u32 s%d, s%d, s%d" % (S_T0, S_T0, S_T1))
    a("s_mul_i32 s%d, s%d, 81920" % (S_T1, S_W))
    a("s_add_u32 s%d, s%d, s%d" % (S_T0, S_T0, S_T1))
    a("s_add_u32 s%d, s%d, %d" % (S_T0, S_T0, WS_PART))
    a("s_add_u32 s%d, s%d, 4096" % (S_T1, S_T0))
    a("v_bfe_u32 v10, v0, 4, 1")
    a("v_mul_u32_u24 v10, 40960, v10")
    a("v_and_b32 v11, 15, v0")
    a("v_lshrrev_b32 v12, 5, v0")
    a("v_lshl_add_u32 v11, v12, 4, v11")
    a("v_lshl_add_u32 v10, v11, 4, v10")
    pol = "sc1" if cfg.mode == "fused" else ""
    for t in range(5):
        base = V_OUT + 16*t
        for j in range(8): a("v_cvt_pk_bf16_f32 v%d, v%d, v%d" % (base+j, base+2*j, base+2*j+1))
        for u in range(2):
            off = (2*t+u)*512
            so = S_T0 if off < 4096 else S_T1
            a("buffer_store_dwordx4 %s, v10, s[%d:%d], s%d offen offset:%d %s" % (vr(base+4*u, 4), SRD_WS, SRD_WS+3, so, off % 4096, pol))

def reduce_stage(a, cfg):
    a("s_lshl_b32 s%d, s%d, 2" % (S_T0, S_P))
    a("s_add_u32 s%d, s%d, s%d" % (S_T0, S_T0, S_BG))
    a("s_lshl_b32 s%d, s%d, 2" % (S_T0, S_T0))
    a("s_add_u32 s%d, s%d, s%d" % (S_T0, S_T0, S_NT))
    a("s_mul_i32 s%d, s%d, 327680" % (S_T0, S_T0))
    a("s_mul_i32 s%d, s%d, 40960" % (S_T1, S_HG))
    a("s_add_u32 s%d, s%d, s%d" % (S_T0, S_T0, S_T1))
    a("s_lshl_b32 s%d, s%d, 10" % (S_T1, S_W8))
    a("s_add_u32 s%d, s%d, s%d" % (S_T0, S_T0, S_T1))
    a("s_add_u32 s%d, s%d, %d" % (S_T0, S_T0, WS_PART))
    a("v_lshlrev_b32 v9, 4, v0")
    pol = "sc1" if cfg.mode == "fused" else ""
    for k in range(8):
        a("buffer_load_dwordx4 %s, v9, s[%d:%d], s%d offen %s" % (vr(16+4*k, 4), SRD_WS, SRD_WS+3, S_T0, pol))
        if k < 7: a("s_add_u32 s%d, s%d, 5120" % (S_T0, S_T0))
    a("s_lshl_b32 s%d, s%d, 3" % (S_T0, S_BG))
    a("s_add_u32 s%d, s%d, s%d" % (S_T0, S_T0, S_HG))
    a("s_mul_i32 s%d, s%d, %d" % (S_T0, S_T0, 16*2560))
    a("s_mul_i32 s%d, s%d, 1280" % (S_T1, S_P))
    a("s_add_u32 s%d, s%d, s%d" % (S_T0, S_T0, S_T1))
    a("s_mul_i32 s%d, s%d, 320" % (S_T1, S_NT))
    a("s_add_u32 s%d, s%d, s%d" % (S_T0, S_T0, S_T1))
    a("s_and_b32 s%d, s%d, 1" % (S_T1, S_NT))
    a("s_add_u32 s%d, s%d, s%d" % (S_T1, S_T1, S_W8))
    a("s_cmp_eq_u32 s%d, 5" % S_T1)
    a("s_cselect_b32 s%d, 0, s%d" % (S_T1, S_T1))
    a("s_lshl_b32 s%d, s%d, 6" % (S_T1, S_T1))
    a("s_add_u32 s%d, s%d, s%d" % (S_T0, S_T0, S_T1))
    a("v_and_b32 v10, 15, v0")
    a("v_mul_u32_u24 v10, 2560, v10")
    a("v_lshrrev_b32 v11, 4, v0")
    a("v_lshl_add_u32 v10, v11, 4, v10")
    a("s_mov_b32 s%d, 0xffff0000" % S_T2)
    for k in range(8):
        a("s_waitcnt vmcnt(%d)" % (7-k))
        for j in range(4):
            src = 16+4*k+j
            if k == 0:
                a("v_lshlrev_b32 v%d, 16, v%d" % (56+2*j, src))
                a("v_and_b32 v%d, s%d, v%d" % (57+2*j, S_T2, src))
            else:
                a("v_lshlrev_b32 v12, 16, v%d" % src)
                a("v_and_b32 v13, s%d, v%d" % (S_T2, src))
                a("v_add_f32 v%d, v%d, v12" % (56+2*j, 56+2*j))
                a("v_add_f32 v%d, v%d, v13" % (57+2*j, 57+2*j))
    for j in range(4): a("v_cvt_pk_bf16_f32 v%d, v%d, v%d" % (12+j, 56+2*j, 57+2*j))
    a("buffer_store_dwordx4 v[12:15], v10, s[%d:%d], s%d offen" % (SRD_OUT, SRD_OUT+3, S_T0))

P1_STAGES = [("p1", i) for i in range(10)] + [("ka",), ("kb",)]
P2_STAGES = [("p2", i, c) for i in range(4) for c in range(3)]

def kernel_text(label, body, nv):
    return (".globl %s\n.p2align 8\n.type %s,@function\n%s:\n" % (label, label, label)) + body

def kd(label, nv):
    return """.amdhsa_kernel %s
  .amdhsa_next_free_vgpr %d
  .amdhsa_next_free_sgpr 102
  .amdhsa_accum_offset %d
  .amdhsa_group_segment_fixed_size 0
  .amdhsa_kernarg_size 104
  .amdhsa_user_sgpr_count 2
  .amdhsa_user_sgpr_kernarg_segment_ptr 1
  .amdhsa_system_sgpr_workgroup_id_x 1
.end_amdhsa_kernel
""" % (label, nv, nv)

def gen_multi(cfg):
    a = Asm(); a.tag = "k1"
    prologue(a, cfg)
    a("s_cmp_ge_u32 s%d, 4" % S_W8); a("s_cbranch_scc1 L_load_k1")
    compute_setup(a, cfg); compute_phase1(a, cfg); softmax_store(a, cfg)
    a("s_endpgm")
    a("L_load_k1:")
    loader_setup(a, cfg); loader_run(a, cfg, P1_STAGES, 0)
    a("L_exit_k1:"); a("s_endpgm")
    k1 = a.text()
    a = Asm(); a.tag = "k2"
    prologue(a, cfg)
    a("s_cmp_ge_u32 s%d, 4" % S_W8); a("s_cbranch_scc1 L_load_k2")
    compute_setup(a, cfg); compute_tr_addr(a, 2); a("s_mov_b32 s%d, 0" % S_SLOT)
    compute_phase2(a, cfg); store_partials(a, cfg)
    a("s_endpgm")
    a("L_load_k2:")
    loader_setup(a, cfg); loader_run(a, cfg, P2_STAGES, 1)
    a("L_exit_k2:"); a("s_endpgm")
    k2 = a.text()
    a = Asm(); a.tag = "k3"
    prologue(a, cfg)
    reduce_stage(a, cfg)
    a("L_exit_k3:"); a("s_endpgm")
    k3 = a.text()
    hdr = open("cdna_kernels/%s.s.ref" % NAME).read().split("; Override launch")[0]
    out = hdr
    out += "; @launch kernel=p1_kernel grid=(256,1,1) block=(512,1,1) lds=%d\n" % LDS
    out += "; @launch kernel=p2_kernel grid=(256,1,1) block=(512,1,1) lds=%d\n" % LDS
    out += "; @launch kernel=p3_kernel grid=(256,1,1) block=(320,1,1) lds=0\n"
    out += '.amdgcn_target "amdgcn-amd-amdhsa--gfx950"\n.text\n'
    out += kernel_text("p1_kernel", k1, 256) + kernel_text("p2_kernel", k2, 256) + kernel_text("p3_kernel", k3, 64)
    out += '.section .rodata,"a"\n.p2align 6\n' + kd("p1_kernel", 256) + ".p2align 6\n" + kd("p2_kernel", 256) + ".p2align 6\n" + kd("p3_kernel", 64)
    return out

if __name__ == "__main__":
    ap = argparse.ArgumentParser()
    ap.add_argument("-o", default="cdna_kernels/%s.s" % NAME)
    ap.add_argument("opts", nargs="*")
    args = ap.parse_args()
    kw = {}
    for o in args.opts:
        k, v = o.split("=")
        kw[k] = int(v) if v.lstrip("-").isdigit() else v
    cfg = Cfg(**kw)
    txt = gen_multi(cfg) if cfg.mode == "multi" else None
    open(args.o, "w").write(txt)
    print("wrote", args.o, len(txt))
```

```python
import sys, argparse
sys.path.insert(0, "gen")
from asmlib import *

NAME = "concat_heads__gqa_block_cached__gqa_block_cached__near_ridge"
SLOT = 40960
NSLOT = 4
LDS = SLOT * NSLOT
WS_P = 0
WS_PART = 0x200000
WS_BYTES = 268435456

S_W8 = 3
SRD_X, SRD_WQ, SRD_K, SRD_V, SRD_WO, SRD_OUT, SRD_WS, SRD_DBG = 4, 8, 12, 16, 20, 24, 28, 32
S_P, S_BG, S_H, S_HG, S_NT, S_W, S_OWN, S_HH = 36, 37, 38, 39, 40, 41, 42, 43
S_T0, S_T1, S_T2, S_T3 = 44, 45, 46, 47
S_C, S_BX, S_BW, S_SX, S_SW = 48, 49, 50, 51, 52
S_M4, S_M6, S_MO, S_MP = 53, 54, 55, 56
S_BKV, S_SV, S_SO, S_SP, S_CF, S_CP, S_HI = 57, 58, 59, 60, 61, 62, 63
S_SLOT, S_DELTA, S_CNT, S_PS = 64, 65, 66, 67
S_SC = 68
S_KSLOT = 69

class Cfg:
    def __init__(s, **kw):
        s.mode = "multi"; s.pol = "nt"; s.rot = 0; s.bar1 = 1; s.bar2 = 1; s.stamp = 0; s.mag = 0; s.magk = 3; s.extra = 0
        s.__dict__.update(kw)

def prologue(a, cfg):
    a("s_cmp_ge_u32 s2, 256")
    a("s_cbranch_scc1 L_exit_%s" % a.tag)
    stamp(a, cfg, 0, True); stamp(a, cfg, 1)
    a("s_and_b32 s%d, s2, 7" % S_T0)
    a("s_lshr_b32 s%d, s%d, 2" % (S_P, S_T0))
    a("s_mul_i32 s%d, s%d, 40" % (S_T1, S_P))
    a("s_load_dwordx8 s[72:79], s[0:1], s%d" % S_T1)
    a("s_load_dwordx2 s[80:81], s[0:1], s%d offset:32" % S_T1)
    a("s_load_dwordx4 s[84:87], s[0:1], 80")
    a("s_load_dwordx2 s[88:89], s[0:1], 96")
    a("v_lshrrev_b32 v1, 6, v0")
    a("v_and_b32 v0, 63, v0")
    a("s_and_b32 s%d, s%d, 3" % (S_T0, S_T0))
    a("v_readfirstlane_b32 s%d, v1" % S_W8)
    a("s_lshr_b32 s%d, s2, 3" % S_T1)
    a("s_and_b32 s%d, s%d, 3" % (S_BG, S_T1))
    a("s_lshr_b32 s%d, s%d, 2" % (S_HH, S_T1))
    a("s_lshl_b32 s%d, s%d, 3" % (S_H, S_T0))
    a("s_add_u32 s%d, s%d, s%d" % (S_H, S_H, S_HH))
    a("s_lshr_b32 s%d, s%d, 2" % (S_HG, S_H))
    a("s_and_b32 s%d, s%d, 3" % (S_OWN, S_HH))
    a("s_sub_u32 s%d, s%d, s%d" % (S_NT, S_OWN, S_BG))
    a("s_and_b32 s%d, s%d, 3" % (S_NT, S_NT))
    a("s_and_b32 s%d, s%d, 3" % (S_W, S_W8))
    a("s_waitcnt lgkmcnt(0)")
    for srd, ptr, nb in ((SRD_X, 72, 655360), (SRD_K, 74, 6291456), (SRD_V, 76, 6291456), (SRD_WQ, 78, 7864320),
                         (SRD_WO, 80, 7864320), (SRD_OUT, 84, 1310720), (SRD_DBG, 86, 256), (SRD_WS, 88, WS_BYTES)):
        a("s_mov_b32 s%d, s%d" % (srd, ptr))
        a("s_mov_b32 s%d, s%d" % (srd+1, ptr+1))
        a("s_mov_b32 s%d, %d" % (srd+2, nb))
        a("s_mov_b32 s%d, 0x00020000" % (srd+3))

WS_STAMP = 0x4000000
def stamp(a, cfg, idx, real=False):
    if not cfg.stamp: return
    a("%s s[70:71]" % ("s_memrealtime" if real else "s_memtime"))
    a("s_waitcnt lgkmcnt(0)")
    a.q = []
    a("s_mov_b32 s%d, s70" % (90+idx))
def mag_start(a, cfg):
    if not cfg.mag: return
    a("s_memrealtime s[70:71]"); a("s_waitcnt lgkmcnt(0)")
    a("s_or_b32 s71, s2, s%d" % S_W8); a("s_cmp_lg_u32 s71, 0"); a("s_cbranch_scc1 L_mags_%s" % a.tag)
    a("v_mov_b32 v10, 0"); a("v_mov_b32 v11, s70"); a("s_mov_b32 s71, %d" % WS_STAMP)
    a("buffer_store_dword v11, v10, s[%d:%d], s71 offen sc1" % (SRD_WS, SRD_WS+3))
    a("L_mags_%s:" % a.tag)
def mag_end(a, cfg):
    if not cfg.mag: return
    a("s_or_b32 s71, s2, s%d" % S_W8); a("s_cmp_lg_u32 s71, 0"); a("s_cbranch_scc1 L_mage_%s" % a.tag)
    a("v_mov_b32 v10, 0"); a("s_mov_b32 s71, %d" % WS_STAMP)
    a("s_waitcnt vmcnt(0)")
    a("s_memrealtime s[72:73]")
    a("buffer_load_dword v11, v10, s[%d:%d], s71 offen sc1" % (SRD_WS, SRD_WS+3))
    a("s_waitcnt vmcnt(0) lgkmcnt(0)")
    a("v_readfirstlane_b32 s74, v11")
    a("s_nop 3")
    a("s_sub_u32 s75, s72, s74"); a("s_min_u32 s75, s75, 20000"); a("s_mul_i32 s75, s75, %d" % cfg.mag)
    a("L_magl_%s:" % a.tag)
    a("s_memrealtime s[76:77]"); a("s_waitcnt lgkmcnt(0)")
    a("s_sub_u32 s76, s76, s72"); a("s_cmp_lt_u32 s76, s75"); a("s_cbranch_scc1 L_magl_%s" % a.tag)
    a("L_mage_%s:" % a.tag)
def stamp_flush(a, cfg, kidx):
    if not cfg.stamp: return
    a("s_lshl_b32 s70, s2, 3"); a("s_add_u32 s70, s70, s%d" % S_W8); a("s_lshl_b32 s70, s70, 6")
    a("s_add_u32 s70, s70, %d" % (WS_STAMP + kidx*0x40000))
    a("v_mov_b32 v10, 0")
    for i in range(0, 12, 4):
        for j in range(4): a("v_mov_b32 v%d, s%d" % (12+j, 90+i+j))
        a("buffer_store_dwordx4 v[12:15], v10, s[%d:%d], s70 offen offset:%d" % (SRD_WS, SRD_WS+3, i*4))
        a("s_nop 1")

VL_X, VL_V, VL_W, VL_O, VL_P = 8, 12, 16, 18, 20
def loader_setup(a, cfg):
    a.c("loader: per-lane source offsets")
    a("v_lshrrev_b32 v1, 3, v0")
    a("v_and_b32 v2, 7, v0")
    a("v_lshrrev_b32 v3, 1, v1")
    a("v_xor_b32 v4, v2, v3")
    a("v_xor_b32 v5, 4, v4")
    a("v_lshlrev_b32 v4, 4, v4")
    a("v_lshlrev_b32 v5, 4, v5")
    a("v_mul_u32_u24 v6, 1280, v1")
    a("v_mul_u32_u24 v7, 384, v1")
    for i in range(4):
        a("v_add_u32 v%d, v6, v%d" % (VL_X+i, 4 + (i & 1)))
        a("v_add_u32 v%d, v7, v%d" % (VL_V+i, 4 + (i & 1)))
        if i:
            a("v_add_u32 v%d, %d, v%d" % (VL_X+i, 8*i*1280, VL_X+i))
            a("v_add_u32 v%d, %d, v%d" % (VL_V+i, 8*i*384, VL_V+i))
    a("v_and_b32 v3, 1, v3")
    a("v_lshlrev_b32 v3, 2, v3")
    a("v_xor_b32 v3, v2, v3")
    a("v_lshlrev_b32 v3, 4, v3")
    a("v_mul_u32_u24 v7, 12288, v1")
    a("v_add_u32 v%d, v7, v3" % VL_W)
    a("v_add_u32 v%d, %d, v%d" % (VL_W+1, 8*12288, VL_W))
    a("v_add_u32 v%d, v6, v3" % VL_O)
    a("v_add_u32 v%d, %d, v%d" % (VL_O+1, 8*1280, VL_O))
    a("v_lshrrev_b32 v1, 2, v0")
    a("v_and_b32 v2, 3, v0")
    a("v_mul_u32_u24 v1, 1280, v1")
    a("v_lshlrev_b32 v2, 4, v2")
    a("v_add_u32 v%d, v1, v2" % VL_P)
    a("s_lshl_b32 s%d, s%d, 12" % (S_M4, S_W))
    a("s_mul_i32 s%d, s%d, 6144" % (S_M6, S_W))
    a("s_lshl_b32 s%d, s%d, 10" % (S_MP, S_W))
    a("s_lshl_b32 s%d, s%d, 2" % (S_T0, S_BG))
    a("s_add_u32 s%d, s%d, s%d" % (S_T0, S_T0, S_W))
    a("s_mul_i32 s%d, s%d, %d" % (S_BX, S_T0, 32*1280))
    a("s_mul_i32 s%d, s%d, %d" % (S_BKV, S_T0, 32*12288))
    a("s_mul_i32 s%d, s%d, %d" % (S_BW, S_W, 16*12288))
    a("s_mul_i32 s%d, s%d, 384" % (S_T0, S_H))
    a("s_add_u32 s%d, s%d, s%d" % (S_BW, S_BW, S_T0))
    if cfg.rot:
        a("s_lshl_b32 s%d, s%d, 1" % (S_C, S_BG))
        a("s_add_u32 s%d, s%d, s%d" % (S_C, S_C, S_HH))
        a("s_mul_i32 s%d, s%d, 5" % (S_C, S_C))
        a("s_lshr_b32 s%d, s%d, 2" % (S_C, S_C))
        a("s_sub_u32 s%d, s%d, 10" % (S_T0, S_C))
        a("s_cmp_ge_u32 s%d, 10" % S_C)
        a("s_cselect_b32 s%d, s%d, s%d" % (S_C, S_T0, S_C))
    else:
        a("s_mov_b32 s%d, 0" % S_C)
    a("s_mul_i32 s%d, s%d, 320" % (S_T0, S_NT))
    a("s_and_b32 s%d, s%d, 1" % (S_T1, S_NT))
    a("s_lshl_b32 s%d, s%d, 6" % (S_T2, S_T1))
    a("s_add_u32 s%d, s%d, s%d" % (S_CF, S_T0, S_T2))
    a("s_xor_b32 s%d, s%d, 1" % (S_T1, S_T1))
    a("s_lshl_b32 s%d, s%d, 8" % (S_T2, S_T1))
    a("s_add_u32 s%d, s%d, s%d" % (S_CP, S_T0, S_T2))
    a("s_mul_i32 s%d, s%d, %d" % (S_T0, S_W, 16*1280))
    a("s_add_u32 s%d, s%d, s%d" % (S_CF, S_CF, S_T0))
    a("s_add_u32 s%d, s%d, s%d" % (S_CP, S_CP, S_T0))

def dma(a, cfg, mbase, mconst, voff, srd, soff, imm=0):
    assert mconst - imm >= 0
    a("s_add_u32 m0, s%d, %d" % (mbase, mconst - imm))
    a("s_nop 0")
    a("buffer_load_dwordx4 v%d, s[%d:%d], s%d offen %s%s lds" % (voff, srd, srd+3, soff, ("offset:%d " % imm) if imm else "", cfg.pol))

def stage_count(st): return {"p1": 10, "ka": 8, "kb": 4, "p2": 9}[st[0]]

def loader_issue(a, cfg, st, slot):
    base = slot * SLOT
    if st[0] == "p1":
        a("s_lshl_b32 s%d, s%d, 7" % (S_SX, S_C))
        a("s_add_u32 s%d, s%d, s%d" % (S_SX, S_SX, S_BX))
        a("s_mul_i32 s%d, s%d, %d" % (S_SW, S_C, 64*12288))
        a("s_add_u32 s%d, s%d, s%d" % (S_SW, S_SW, S_BW))
        for b in range(2):
            for j in range(3):
                dma(a, cfg, S_M6, base + 16384 + b*3072 + j*1024, VL_W+b, SRD_WQ, S_SW, j*128)
        for i in range(4):
            dma(a, cfg, S_M4, base + i*1024, VL_X+i, SRD_X, S_SX)
        a("s_add_u32 s%d, s%d, 1" % (S_C, S_C))
        a("s_cmp_eq_u32 s%d, 10" % S_C)
        a("s_cselect_b32 s%d, 0, s%d" % (S_C, S_C))
    elif st[0] in ("ka", "kb"):
        a("s_mul_i32 s%d, s%d, 12288" % (S_SV, S_H))
        a("s_add_u32 s%d, s%d, s%d" % (S_SV, S_SV, S_BKV))
        for n, c in enumerate((0, 1) if st[0] == "ka" else (2,)):
            for i in range(4):
                dma(a, cfg, S_M4, base + n*16384 + i*1024, VL_V+i, SRD_K, S_SV, c*128)
    else:
        _, hi, c = st
        if c == 0:
            if cfg.rot:
                a("s_add_u32 s%d, s%d, %d" % (S_HI, S_OWN, hi))
                a("s_and_b32 s%d, s%d, 3" % (S_HI, S_HI))
            else:
                a("s_mov_b32 s%d, %d" % (S_HI, hi))
            a("s_lshl_b32 s%d, s%d, 2" % (S_T0, S_HG))
            a("s_add_u32 s%d, s%d, s%d" % (S_HI, S_HI, S_T0))
            a("s_mul_i32 s%d, s%d, 12288" % (S_SV, S_HI))
            a("s_add_u32 s%d, s%d, s%d" % (S_SV, S_SV, S_BKV))
            a("s_mul_i32 s%d, s%d, %d" % (S_T0, S_HI, 192*1280))
            a("s_add_u32 s%d, s%d, s%d" % (S_SO, S_T0, S_CF))
            a("s_add_u32 s%d, s%d, s%d" % (S_SP, S_T0, S_CP))
        else:
            a("s_add_u32 s%d, s%d, %d" % (S_SO, S_SO, 64*1280))
            a("s_add_u32 s%d, s%d, %d" % (S_SP, S_SP, 64*1280))
            a("s_add_u32 s%d, s%d, 128" % (S_SV, S_SV))
        for b in range(2):
            for j in range(2):
                dma(a, cfg, S_M4, base + 16384 + b*2048 + j*1024, VL_O+b, SRD_WO, S_SO, j*128)
        dma(a, cfg, S_MP, base + 32768, VL_P, SRD_WO, S_SP)
        for i in range(4):
            dma(a, cfg, S_M4, base + i*1024, VL_V+i, SRD_V, S_SV)

def loader_run(a, cfg, stages, extra_barriers):
    n = len(stages)
    issued = 0
    for s in range(min(NSLOT, n)):
        loader_issue(a, cfg, stages[s], s % NSLOT); issued += 1
    for s in range(n):
        cnt = sum(stage_count(stages[k]) for k in range(s+1, issued))
        a("s_waitcnt vmcnt(%d)" % cnt)
        a("s_barrier")
        if s >= 1 and issued < n:
            assert issued == s + NSLOT - 1
            loader_issue(a, cfg, stages[issued], issued % NSLOT); issued += 1
    for _ in range(extra_barriers):
        a("s_barrier")

V_AX = 2
V_AE, V_AO, V_A4 = 6, 7, 8
V_L16 = 9
V_T = 10
V_B = 16
V_A = 24
V_P = 48
V_K = 56
V_S = 104
V_Q = 160
V_VW = 64
V_OUT = 160

def compute_setup(a, cfg):
    a.c("compute: LDS read addresses")
    a("v_and_b32 v10, 31, v0")
    a("v_lshrrev_b32 v11, 5, v0")
    a("v_lshrrev_b32 v12, 1, v10")
    a("v_and_b32 v12, 7, v12")
    a("v_xor_b32 v12, v12, v11")
    a("v_lshlrev_b32 v12, 4, v12")
    a("v_lshl_add_u32 v12, v10, 7, v12")
    a("s_lshl_b32 s%d, s%d, 12" % (S_T0, S_W))
    a("v_add_u32 v%d, s%d, v12" % (V_AX, S_T0))
    for s in range(1, 4):
        a("v_xor_b32 v%d, %d, v%d" % (V_AX+s, 32*s, V_AX))
    a("v_lshlrev_b32 v%d, 4, v0" % V_L16)
    a("s_mov_b32 s%d, %d" % (S_KSLOT, SLOT))

def compute_tr_addr(a, phase, slot_sgpr=None):
    a("v_bfe_u32 v10, v0, 2, 2")
    a("v_bfe_u32 v11, v0, 4, 1")
    a("v_lshrrev_b32 v12, 5, v0")
    a("v_and_b32 v13, 1, v0")
    a("v_bfe_u32 v14, v0, 1, 1")
    a("v_lshl_add_u32 v13, v13, 1, v14")
    a("v_lshlrev_b32 v13, 3, v13")
    a("v_lshl_add_u32 v13, v11, 5, v13")
    a("v_lshrrev_b32 v14, 1, v10")
    a("v_mul_u32_u24 v15, %d, v12" % (3072 if phase == 1 else 2048))
    a("v_lshl_add_u32 v15, v10, 7, v15")
    a("v_add_u32 v15, v15, v13")
    a("v_add_u32 v15, 16384, v15")
    a("v_lshl_add_u32 v%d, v14, 6, v15" % V_AE)
    a("v_xor_b32 v%d, 64, v%d" % (V_AO, V_AE))
    if phase == 2:
        a("v_lshlrev_b32 v15, 9, v12")
        a("v_lshl_add_u32 v15, v10, 6, v15")
        a("v_add_u32 v15, v15, v13")
        a("v_add_u32 v%d, 32768, v15" % V_A4)
    if slot_sgpr is not None:
        for r in (V_AE, V_AO) + ((V_A4,) if phase == 2 else ()):
            a("v_add_u32 v%d, s%d, v%d" % (r, slot_sgpr, r))

def advance_slot(a, phase):
    a("s_add_u32 s%d, s%d, %d" % (S_SLOT, S_SLOT, SLOT))
    a("s_cmp_eq_u32 s%d, %d" % (S_SLOT, LDS))
    a("s_cselect_b32 s%d, 0, s%d" % (S_SLOT, S_SLOT))
    a("s_cselect_b32 s%d, %d, s%d" % (S_DELTA, SLOT - LDS, S_KSLOT))
    for r in list(range(V_AX, V_AX+4)) + [V_AE, V_AO] + ([V_A4] if phase == 2 else []):
        a("v_add_u32 v%d, s%d, v%d" % (r, S_DELTA, r))

def rd_b(a, s, off=0, dst=None):
    d = V_B + 4*(s & 1) if dst is None else dst
    a.ds("ds_read_b128 %s, v%d offset:%d" % (vr(d, 4), V_AX+s, off), R(d, 4))
def rd_a(a, phase, s, t):
    d = V_A + 4*t
    for jj in range(2):
        if phase == 1:
            ad, off = (V_AE, V_AO)[t & 1], s*6144 + (t >> 1)*1024 + jj*512
        elif t < 4:
            ad, off = (V_AE, V_AO)[t & 1], s*4096 + (t >> 1)*1024 + jj*512
        else:
            ad, off = V_A4, s*1024 + jj*256
        a.ds("ds_read_b64_tr_b16 %s, v%d offset:%d" % (vr(d+2*jj, 2), ad, off), R(d+2*jj, 2))
def mfma(a, d, x, y, c):
    a("v_mfma_f32_32x32x16_bf16 %s, %s, %s, %s" % (vr(d, 16), vr(x, 4), vr(y, 4), c if isinstance(c, str) else vr(c, 16)))

def first_reads(a, phase):
    rd_b(a, 0)
    for t in range(6 if phase == 1 else 5): rd_a(a, phase, 0, t)

def gemm_stage(a, cfg, phase, zero_first=False, tail=None):
    nt = 6 if phase == 1 else 5
    bar = cfg.bar1 if phase == 1 else cfg.bar2
    for s in range(4):
        b = V_B + 4*(s & 1)
        for t in range(nt):
            a.need(R(V_A+4*t, 4) + R(b, 4))
            if phase == 1:
                mfma(a, V_Q+16*t, V_A+4*t, b, V_Q+16*t)
            else:
                mfma(a, V_VW+16*t, b, V_A+4*t, "0" if (zero_first and s == 0) else V_VW+16*t)
            if s < 3:
                if t == 0: rd_b(a, s+1)
                rd_a(a, phase, s+1, t)
            else:
                if t == bar:
                    a.drain()
                    a("s_barrier")
                    advance_slot(a, phase)
                    if tail is None:
                        rd_b(a, 0)
                        for tt in range(bar+1): rd_a(a, phase, 0, tt)
                if tail is not None:
                    if t >= bar: tail(t)
                elif t > bar:
                    rd_a(a, phase, 0, t)

def compute_phase1(a, cfg):
    compute_tr_addr(a, 1)
    for r in range(V_Q, V_Q+96): a("v_mov_b32 v%d, 0" % r)
    a("s_mov_b32 s%d, 0" % S_SLOT)
    a("s_mov_b32 s%d, 9" % S_CNT)
    stamp(a, cfg, 2)
    a("s_barrier")
    stamp(a, cfg, 3)
    first_reads(a, 1)
    q0 = list(a.q)
    a("L_p1_%s:" % a.tag)
    gemm_stage(a, cfg, 1)
    assert a.q == q0, (a.q, q0)
    a("s_sub_u32 s%d, s%d, 1" % (S_CNT, S_CNT))
    a("s_cmp_lg_u32 s%d, 0" % S_CNT)
    a("s_cbranch_scc1 L_p1_%s" % a.tag)
    if cfg.stamp:
        stamp(a, cfg, 4);
    def ktail(t):
        if t == cfg.bar1:
            for f in range(8):
                rd_b(a, f & 3, (f >> 2)*16384, V_K + 4*f)
    gemm_stage(a, cfg, 1, tail=ktail)
    a.drain()
    a("s_barrier")
    advance_slot(a, 1)
    for f in range(8, 12): rd_b(a, f & 3, 0, V_K + 4*f)
    def cvt_tile(base):
        for j in range(8): a("v_cvt_pk_bf16_f32 v%d, v%d, v%d" % (base+j, base+2*j, base+2*j+1))
    cvt_tile(V_Q)
    for t in range(6):
        if t < 5: cvt_tile(V_Q + 16*(t+1))
        else: a("s_nop 1")
        for u in range(2):
            f = 2*t + u
            a.need(R(V_K+4*f, 4))
            mfma(a, V_S, V_K+4*f, V_Q+16*t+4*u, "0" if f == 0 else V_S)

def softmax_store(a, cfg):
    S = V_S
    a("s_mov_b32 s%d, 0x3dd53b95" % S_SC)
    a("s_nop 10")
    a("v_max3_f32 v10, v%d, v%d, v%d" % (S, S+1, S+2))
    for i in range(3, 15, 2): a("v_max3_f32 v10, v10, v%d, v%d" % (S+i, S+i+1))
    a("v_max_f32 v10, v10, v%d" % (S+15))
    a("v_mov_b32 v11, v10")
    a("s_nop 1")
    a("v_permlane32_swap_b32 v10, v11")
    a("v_max_f32 v10, v10, v11")
    a("v_mul_f32 v10, s%d, v10" % S_SC)
    for i in range(16): a("v_fma_f32 v%d, v%d, s%d, -v10" % (S+i, S+i, S_SC))
    for i in range(16): a("v_exp_f32 v%d, v%d" % (S+i, S+i))
    a("v_add_f32 v10, v%d, v%d" % (S, S+1))
    a("v_add_f32 v11, v%d, v%d" % (S+2, S+3))
    for i in range(4, 16, 2):
        a("v_add_f32 v10, v10, v%d" % (S+i))
        a("v_add_f32 v11, v11, v%d" % (S+i+1))
    a("v_add_f32 v10, v10, v11")
    a("v_mov_b32 v11, v10")
    a("s_nop 1")
    a("v_permlane32_swap_b32 v10, v11")
    a("v_add_f32 v10, v10, v11")
    a("v_rcp_f32 v10, v10")
    a("s_nop 0")
    for i in range(16): a("v_mul_f32 v%d, v%d, v10" % (S+i, S+i))
    for j in range(8): a("v_cvt_pk_bf16_f32 v%d, v%d, v%d" % (V_P+j, S+2*j, S+2*j+1))
    unit_off(a, S_PS, S_H)
    pol = "sc1" if cfg.mode == "fused" else ""
    a("buffer_store_dwordx4 %s, v%d, s[%d:%d], s%d offen %s" % (vr(V_P, 4), V_L16, SRD_WS, SRD_WS+3, S_PS, pol))
    a("buffer_store_dwordx4 %s, v%d, s[%d:%d], s%d offen offset:1024 %s" % (vr(V_P+4, 4), V_L16, SRD_WS, SRD_WS+3, S_PS, pol))

def unit_off(a, dst, hreg):
    a("s_lshl_b32 s%d, s%d, 2" % (S_T0, S_P))
    a("s_add_u32 s%d, s%d, s%d" % (S_T0, S_T0, S_BG))
    a("s_lshl_b32 s%d, s%d, 2" % (S_T0, S_T0))
    a("s_add_u32 s%d, s%d, s%d" % (S_T0, S_T0, S_W))
    a("s_lshl_b32 s%d, s%d, 5" % (S_T0, S_T0))
    a("s_add_u32 s%d, s%d, s%d" % (S_T0, S_T0, hreg))
    a("s_lshl_b32 s%d, s%d, 11" % (dst, S_T0))
    if WS_P: a("s_add_u32 s%d, s%d, %d" % (dst, dst, WS_P))

def compute_phase2(a, cfg):
    for r in range(V_OUT, V_OUT+80): a("v_mov_b32 v%d, 0" % r)
    a("s_mov_b32 s%d, 0" % S_CNT)
    stamp(a, cfg, 2)
    a("s_barrier")
    stamp(a, cfg, 3)
    first_reads(a, 2)
    q0 = list(a.q)
    a("L_p2_%s:" % a.tag)
    if cfg.rot:
        a("s_add_u32 s%d, s%d, s%d" % (S_HI, S_OWN, S_CNT))
        a("s_and_b32 s%d, s%d, 3" % (S_HI, S_HI))
    else:
        a("s_mov_b32 s%d, s%d" % (S_HI, S_CNT))
    a("s_lshl_b32 s%d, s%d, 2" % (S_T1, S_HG))
    a("s_add_u32 s%d, s%d, s%d" % (S_HI, S_HI, S_T1))
    unit_off(a, S_PS, S_HI)
    a("buffer_load_dwordx4 %s, v%d, s[%d:%d], s%d offen" % (vr(V_P, 4), V_L16, SRD_WS, SRD_WS+3, S_PS))
    a("buffer_load_dwordx4 %s, v%d, s[%d:%d], s%d offen offset:1024" % (vr(V_P+4, 4), V_L16, SRD_WS, SRD_WS+3, S_PS))
    for c in range(3):
        gemm_stage(a, cfg, 2, zero_first=(c == 0))
    head_epilogue(a)
    assert a.q == q0, (a.q, q0)
    a("s_add_u32 s%d, s%d, 1" % (S_CNT, S_CNT))
    a("s_cmp_lg_u32 s%d, 4" % S_CNT)
    a("s_cbranch_scc1 L_p2_%s" % a.tag)

def head_epilogue(a):
    def cvt_tile(base):
        for j in range(8): a("v_cvt_pk_bf16_f32 v%d, v%d, v%d" % (base+j, base+2*j, base+2*j+1))
    cvt_tile(V_VW)
    a("s_waitcnt vmcnt(0)")
    for t in range(5):
        if t < 4: cvt_tile(V_VW + 16*(t+1))
        for u in range(2):
            mfma(a, V_OUT+16*t, V_VW+16*t+4*u, V_P+4*u, V_OUT+16*t)

def store_partials(a, cfg):
    a("s_lshl_b32 s%d, s%d, 2" % (S_T0, S_P))
    a("s_add_u32 s%d, s%d, s%d" % (S_T0, S_T0, S_BG))
    a("s_lshl_b32 s%d, s%d, 2" % (S_T0, S_T0))
    a("s_add_u32 s%d, s%d, s%d" % (S_T0, S_T0, S_NT))
    a("s_mul_i32 s%d, s%d, 327680" % (S_T0, S_T0))
    a("s_mul_i32 s%d, s%d, 5120" % (S_T1, S_HG))
    a("s_add_u32 s%d, s%d, s%d" % (S_T0, S_T0, S_T1))
    a("s_mul_i32 s%d, s%d, 81920" % (S_T1, S_W))
    a("s_add_u32 s%d, s%d, s%d" % (S_T0, S_T0, S_T1))
    a("s_add_u32 s%d, s%d, %d" % (S_T0, S_T0, WS_PART))
    a("s_add_u32 s%d, s%d, 4096" % (S_T1, S_T0))
    a("v_bfe_u32 v10, v0, 4, 1")
    a("v_mul_u32_u24 v10, 40960, v10")
    a("v_and_b32 v11, 15, v0")
    a("v_lshrrev_b32 v12, 5, v0")
    a("v_lshl_add_u32 v11, v12, 4, v11")
    a("v_lshl_add_u32 v10, v11, 4, v10")
    pol = "sc1" if cfg.mode == "fused" else ""
    for t in range(5):
        base = V_OUT + 16*t
        for j in range(8): a("v_cvt_pk_bf16_f32 v%d, v%d, v%d" % (base+j, base+2*j, base+2*j+1))
        for u in range(2):
            off = (2*t+u)*512
            so = S_T0 if off < 4096 else S_T1
            a("buffer_store_dwordx4 %s, v10, s[%d:%d], s%d offen offset:%d %s" % (vr(base+4*u, 4), SRD_WS, SRD_WS+3, so, off % 4096, pol))

def reduce_stage(a, cfg):
    a("s_lshl_b32 s%d, s%d, 2" % (S_T0, S_P))
    a("s_add_u32 s%d, s%d, s%d" % (S_T0, S_T0, S_BG))
    a("s_lshl_b32 s%d, s%d, 2" % (S_T0, S_T0))
    a("s_add_u32 s%d, s%d, s%d" % (S_T0, S_T0, S_NT))
    a("s_mul_i32 s%d, s%d, 327680" % (S_T0, S_T0))
    a("s_mul_i32 s%d, s%d, 40960" % (S_T1, S_HG))
    a("s_add_u32 s%d, s%d, s%d" % (S_T0, S_T0, S_T1))
    a("s_lshl_b32 s%d, s%d, 10" % (S_T1, S_W8))
    a("s_add_u32 s%d, s%d, s%d" % (S_T0, S_T0, S_T1))
    a("s_add_u32 s%d, s%d, %d" % (S_T0, S_T0, WS_PART))
    a("v_lshlrev_b32 v9, 4, v0")
    pol = "sc1" if cfg.mode == "fused" else ""
    for k in range(8):
        a("buffer_load_dwordx4 %s, v9, s[%d:%d], s%d offen %s" % (vr(16+4*k, 4), SRD_WS, SRD_WS+3, S_T0, pol))
        if k < 7: a("s_add_u32 s%d, s%d, 5120" % (S_T0, S_T0))
    a("s_lshl_b32 s%d, s%d, 3" % (S_T0, S_BG))
    a("s_add_u32 s%d, s%d, s%d" % (S_T0, S_T0, S_HG))
    a("s_mul_i32 s%d, s%d, %d" % (S_T0, S_T0, 16*2560))
    a("s_mul_i32 s%d, s%d, 1280" % (S_T1, S_P))
    a("s_add_u32 s%d, s%d, s%d" % (S_T0, S_T0, S_T1))
    a("s_mul_i32 s%d, s%d, 320" % (S_T1, S_NT))
    a("s_add_u32 s%d, s%d, s%d" % (S_T0, S_T0, S_T1))
    a("s_and_b32 s%d, s%d, 1" % (S_T1, S_NT))
    a("s_add_u32 s%d, s%d, s%d" % (S_T1, S_T1, S_W8))
    a("s_cmp_eq_u32 s%d, 5" % S_T1)
    a("s_cselect_b32 s%d, 0, s%d" % (S_T1, S_T1))
    a("s_lshl_b32 s%d, s%d, 6" % (S_T1, S_T1))
    a("s_add_u32 s%d, s%d, s%d" % (S_T0, S_T0, S_T1))
    a("v_and_b32 v10, 15, v0")
    a("v_mul_u32_u24 v10, 2560, v10")
    a("v_lshrrev_b32 v11, 4, v0")
    a("v_lshl_add_u32 v10, v11, 4, v10")
    a("s_mov_b32 s%d, 0xffff0000" % S_T2)
    for k in range(8):
        a("s_waitcnt vmcnt(%d)" % (7-k))
        for j in range(4):
            src = 16+4*k+j
            if k == 0:
                a("v_lshlrev_b32 v%d, 16, v%d" % (56+2*j, src))
                a("v_and_b32 v%d, s%d, v%d" % (57+2*j, S_T2, src))
            else:
                a("v_lshlrev_b32 v12, 16, v%d" % src)
                a("v_and_b32 v13, s%d, v%d" % (S_T2, src))
                a("v_add_f32 v%d, v%d, v12" % (56+2*j, 56+2*j))
                a("v_add_f32 v%d, v%d, v13" % (57+2*j, 57+2*j))
    for j in range(4): a("v_cvt_pk_bf16_f32 v%d, v%d, v%d" % (12+j, 56+2*j, 57+2*j))
    a("buffer_store_dwordx4 v[12:15], v10, s[%d:%d], s%d offen" % (SRD_OUT, SRD_OUT+3, S_T0))

P1_STAGES = [("p1", i) for i in range(10)] + [("ka",), ("kb",)]
P2_STAGES = [("p2", i, c) for i in range(4) for c in range(3)]

def kernel_text(label, body, nv):
    return (".globl %s\n.p2align 8\n.type %s,@function\n%s:\n" % (label, label, label)) + body

def kd(label, nv):
    return """.amdhsa_kernel %s
  .amdhsa_next_free_vgpr %d
  .amdhsa_next_free_sgpr 102
  .amdhsa_accum_offset %d
  .amdhsa_group_segment_fixed_size 0
  .amdhsa_kernarg_size 104
  .amdhsa_user_sgpr_count 2
  .amdhsa_user_sgpr_kernarg_segment_ptr 1
  .amdhsa_system_sgpr_workgroup_id_x 1
.end_amdhsa_kernel
""" % (label, nv, nv)

def gen_multi(cfg):
    a = Asm(); a.tag = "k1"
    prologue(a, cfg); mag_start(a, cfg)
    a("s_cmp_ge_u32 s%d, 4" % S_W8); a("s_cbranch_scc1 L_load_k1")
    compute_setup(a, cfg); compute_phase1(a, cfg); stamp(a, cfg, 5); softmax_store(a, cfg)
    if cfg.stamp:
        stamp(a, cfg, 6); a("s_waitcnt vmcnt(0)"); stamp(a, cfg, 7); stamp(a, cfg, 8, True); stamp_flush(a, cfg, 0)
    if cfg.magk == 1: mag_end(a, cfg)
    a("s_endpgm")
    a("L_load_k1:")
    loader_setup(a, cfg); loader_run(a, cfg, P1_STAGES, 0)
    a("L_exit_k1:"); a("s_endpgm")
    k1 = a.text()
    a = Asm(); a.tag = "k2"
    prologue(a, cfg)
    a("s_cmp_ge_u32 s%d, 4" % S_W8); a("s_cbranch_scc1 L_load_k2")
    compute_setup(a, cfg); compute_tr_addr(a, 2); a("s_mov_b32 s%d, 0" % S_SLOT)
    compute_phase2(a, cfg); stamp(a, cfg, 5); store_partials(a, cfg)
    if cfg.stamp:
        stamp(a, cfg, 6); a("s_waitcnt vmcnt(0)"); stamp(a, cfg, 7); stamp(a, cfg, 8, True); stamp_flush(a, cfg, 1)
    a("s_endpgm")
    a("L_load_k2:")
    loader_setup(a, cfg); loader_run(a, cfg, P2_STAGES, 1)
    a("L_exit_k2:"); a("s_endpgm")
    k2 = a.text()
    a = Asm(); a.tag = "k3"
    prologue(a, cfg)
    reduce_stage(a, cfg)
    if cfg.stamp:
        stamp(a, cfg, 6); a("s_waitcnt vmcnt(0)"); stamp(a, cfg, 7); stamp(a, cfg, 8, True); stamp_flush(a, cfg, 2)
    if cfg.magk == 3: mag_end(a, cfg)
    a("L_exit_k3:"); a("s_endpgm")
    k3 = a.text()
    hdr = open("cdna_kernels/%s.s.ref" % NAME).read().split("; Override launch")[0]
    out = hdr
    out += "; @launch kernel=p1_kernel grid=(256,1,1) block=(512,1,1) lds=%d\n" % LDS
    out += "; @launch kernel=p2_kernel grid=(256,1,1) block=(512,1,1) lds=%d\n" % LDS
    out += "; @launch kernel=p3_kernel grid=(256,1,1) block=(320,1,1) lds=0\n"
    for _ in range(cfg.extra): out += "; @launch kernel=p3_kernel grid=(256,1,1) block=(320,1,1) lds=0\n"
    out += '.amdgcn_target "amdgcn-amd-amdhsa--gfx950"\n.text\n'
    out += kernel_text("p1_kernel", k1, 256) + kernel_text("p2_kernel", k2, 256) + kernel_text("p3_kernel", k3, 64)
    out += '.section .rodata,"a"\n.p2align 6\n' + kd("p1_kernel", 256) + ".p2align 6\n" + kd("p2_kernel", 256) + ".p2align 6\n" + kd("p3_kernel", 64)
    return out

if __name__ == "__main__":
    ap = argparse.ArgumentParser()
    ap.add_argument("-o", default="cdna_kernels/%s.s" % NAME)
    ap.add_argument("opts", nargs="*")
    args = ap.parse_args()
    kw = {}
    for o in args.opts:
        k, v = o.split("=")
        kw[k] = int(v) if v.lstrip("-").isdigit() else v
    cfg = Cfg(**kw)
    txt = gen_multi(cfg) if cfg.mode == "multi" else None
    open(args.o, "w").write(txt)
    print("wrote", args.o, len(txt))
```

```python
import sys
sys.path.insert(0,'gen')
import gen
from asmlib import *
def probe_lat(slot, stride, n, mag, pol=""):
    a=Asm()
    a("s_cmp_lg_u32 s2, 0"); a("s_cbranch_scc1 L_pexit")
    a("s_load_dwordx2 s[4:5], s[0:1], %d" % (slot*8)); a("s_waitcnt lgkmcnt(0)")
    a("s_mov_b32 s6, 655360"); a("s_mov_b32 s7, 0x20000")
    a("v_mov_b32 v1, 0"); a("s_mov_b32 s8, 0")
    a("buffer_load_dword v2, v1, s[4:7], s8 offen %s" % pol); a("s_waitcnt vmcnt(0)")
    a("s_mov_b32 s9, %d" % n)
    a("s_memrealtime s[10:11]"); a("s_waitcnt lgkmcnt(0)")
    a("L_pl:")
    a("s_add_u32 s8, s8, %d" % stride)
    a("buffer_load_dword v2, v1, s[4:7], s8 offen %s" % pol); a("s_waitcnt vmcnt(0)")
    a("s_sub_u32 s9, s9, 1"); a("s_cmp_lg_u32 s9, 0"); a("s_cbranch_scc1 L_pl")
    a("s_memrealtime s[12:13]"); a("s_waitcnt lgkmcnt(0)")
    a("s_sub_u32 s14, s12, s10"); a("s_min_u32 s14, s14, 20000"); a("s_mul_i32 s14, s14, %d" % mag)
    a("L_ps:")
    a("s_memrealtime s[16:17]"); a("s_waitcnt lgkmcnt(0)")
    a("s_sub_u32 s16, s16, s12"); a("s_cmp_lt_u32 s16, s14"); a("s_cbranch_scc1 L_ps")
    a("L_pexit:"); a("s_endpgm")
    return a.text()
def make(path, body):
    t=gen.gen_multi(gen.Cfg(pol=""))
    t=t.replace("; @launch kernel=p1_kernel","; @launch kernel=p0_kernel grid=(256,1,1) block=(64,1,1) lds=0\n; @launch kernel=p1_kernel",1)
    t=t.replace(".globl p1_kernel", gen.kernel_text("p0_kernel", body, 64)+".globl p1_kernel",1)
    t+=".p2align 6\n"+gen.kd("p0_kernel",64)
    open(path,"w").write(t)
make("pr_a0.s", probe_lat(0, 4096, 100, 0))
make("pr_a.s", probe_lat(0, 4096, 100, 10))
make("pr_b.s", probe_lat(3, 4096, 100, 10))
make("pr_c.s", probe_lat(9, 4096, 100, 10))
make("pr_d.s", probe_lat(6, 256, 100, 10))
make("pr_e.s", probe_lat(12, 4096, 100, 10))
```

```python
import sys, argparse
sys.path.insert(0, "gen")
from asmlib import *

NAME = "concat_heads__gqa_block_cached__gqa_block_cached__near_ridge"
SLOT = 40960
NSLOT = 4
LDS = SLOT * NSLOT
WS_P = 0
WS_PART = 0x200000
WS_BYTES = 268435456

S_W8 = 3
SRD_X, SRD_WQ, SRD_K, SRD_V, SRD_WO, SRD_OUT, SRD_WS, SRD_DBG = 4, 8, 12, 16, 20, 24, 28, 32
S_P, S_BG, S_H, S_HG, S_NT, S_W, S_OWN, S_HH = 36, 37, 38, 39, 40, 41, 42, 43
S_T0, S_T1, S_T2, S_T3 = 44, 45, 46, 47
S_C, S_BX, S_BW, S_SX, S_SW = 48, 49, 50, 51, 52
S_M4, S_M6, S_MO, S_MP = 53, 54, 55, 56
S_BKV, S_SV, S_SO, S_SP, S_CF, S_CP, S_HI = 57, 58, 59, 60, 61, 62, 63
S_SLOT, S_DELTA, S_CNT, S_PS = 64, 65, 66, 67
S_SC = 68
S_KSLOT = 69

class Cfg:
    def __init__(s, **kw):
        s.mode = "multi"; s.pol = "nt"; s.rot = 0; s.bar1 = 1; s.bar2 = 1; s.stamp = 0; s.mag = 0; s.magk = 3; s.extra = 0; s.skew = 1; s.var = 1
        s.__dict__.update(kw)

def prologue(a, cfg):
    a("s_cmp_ge_u32 s2, 256")
    a("s_cbranch_scc1 L_exit_%s" % a.tag)
    stamp(a, cfg, 0, True); stamp(a, cfg, 1)
    a("s_and_b32 s%d, s2, 7" % S_T0)
    a("s_lshr_b32 s%d, s%d, 2" % (S_P, S_T0))
    a("s_mul_i32 s%d, s%d, 40" % (S_T1, S_P))
    a("s_load_dwordx8 s[72:79], s[0:1], s%d" % S_T1)
    a("s_load_dwordx2 s[80:81], s[0:1], s%d offset:32" % S_T1)
    a("s_load_dwordx4 s[84:87], s[0:1], 80")
    a("s_load_dwordx2 s[88:89], s[0:1], 96")
    a("v_lshrrev_b32 v1, 6, v0")
    a("v_and_b32 v0, 63, v0")
    a("s_and_b32 s%d, s%d, 3" % (S_T0, S_T0))
    a("v_readfirstlane_b32 s%d, v1" % S_W8)
    a("s_lshr_b32 s%d, s2, 3" % S_T1)
    a("s_and_b32 s%d, s%d, 3" % (S_BG, S_T1))
    a("s_lshr_b32 s%d, s%d, 2" % (S_HH, S_T1))
    a("s_lshl_b32 s%d, s%d, 3" % (S_H, S_T0))
    a("s_add_u32 s%d, s%d, s%d" % (S_H, S_H, S_HH))
    a("s_lshr_b32 s%d, s%d, 2" % (S_HG, S_H))
    a("s_and_b32 s%d, s%d, 3" % (S_OWN, S_HH))
    a("s_sub_u32 s%d, s%d, s%d" % (S_NT, S_OWN, S_BG))
    a("s_and_b32 s%d, s%d, 3" % (S_NT, S_NT))
    a("s_and_b32 s%d, s%d, 3" % (S_W, S_W8))
    a("s_waitcnt lgkmcnt(0)")
    for srd, ptr, nb in ((SRD_X, 72, 655360), (SRD_K, 74, 6291456), (SRD_V, 76, 6291456), (SRD_WQ, 78, 7864320),
                         (SRD_WO, 80, 7864320), (SRD_OUT, 84, 1310720), (SRD_DBG, 86, 256), (SRD_WS, 88, WS_BYTES)):
        a("s_mov_b32 s%d, s%d" % (srd, ptr))
        a("s_mov_b32 s%d, s%d" % (srd+1, ptr+1))
        a("s_mov_b32 s%d, %d" % (srd+2, nb))
        a("s_mov_b32 s%d, 0x00020000" % (srd+3))

WS_STAMP = 0x4000000
def stamp(a, cfg, idx, real=False):
    if not cfg.stamp: return
    a("%s s[70:71]" % ("s_memrealtime" if real else "s_memtime"))
    a("s_waitcnt lgkmcnt(0)")
    a.q = []
    a("s_mov_b32 s%d, s70" % (90+idx))
def mag_start(a, cfg):
    if not cfg.mag: return
    a("s_memrealtime s[70:71]"); a("s_waitcnt lgkmcnt(0)")
    a("s_or_b32 s71, s2, s%d" % S_W8); a("s_cmp_lg_u32 s71, 0"); a("s_cbranch_scc1 L_mags_%s" % a.tag)
    a("v_mov_b32 v10, 0"); a("v_mov_b32 v11, s70"); a("s_mov_b32 s71, %d" % WS_STAMP)
    a("buffer_store_dword v11, v10, s[%d:%d], s71 offen sc1" % (SRD_WS, SRD_WS+3))
    a("L_mags_%s:" % a.tag)
def mag_end(a, cfg, wave=0):
    if not cfg.mag: return
    a("s_mov_b64 exec, -1")
    a("s_xor_b32 s71, s%d, %d" % (S_W8, wave)); a("s_or_b32 s71, s2, s71"); a("s_cmp_lg_u32 s71, 0"); a("s_cbranch_scc1 L_mage_%s" % a.tag)
    a("v_mov_b32 v10, 0"); a("s_mov_b32 s71, %d" % WS_STAMP)
    a("s_waitcnt vmcnt(0)")
    a("s_memrealtime s[72:73]")
    a("buffer_load_dword v11, v10, s[%d:%d], s71 offen sc1" % (SRD_WS, SRD_WS+3))
    a("s_waitcnt vmcnt(0) lgkmcnt(0)")
    a("v_readfirstlane_b32 s74, v11")
    a("s_nop 3")
    a("s_sub_u32 s75, s72, s74"); a("s_min_u32 s75, s75, 20000"); a("s_mul_i32 s75, s75, %d" % cfg.mag)
    a("L_magl_%s:" % a.tag)
    a("s_memrealtime s[76:77]"); a("s_waitcnt lgkmcnt(0)")
    a("s_sub_u32 s76, s76, s72"); a("s_cmp_lt_u32 s76, s75"); a("s_cbranch_scc1 L_magl_%s" % a.tag)
    a("L_mage_%s:" % a.tag)
def stamp_flush(a, cfg, kidx):
    if not cfg.stamp: return
    a("s_lshl_b32 s70, s2, 3"); a("s_add_u32 s70, s70, s%d" % S_W8); a("s_lshl_b32 s70, s70, 6")
    a("s_add_u32 s70, s70, %d" % (WS_STAMP + kidx*0x40000))
    a("v_mov_b32 v10, 0")
    for i in range(0, 12, 4):
        for j in range(4): a("v_mov_b32 v%d, s%d" % (12+j, 90+i+j))
        a("buffer_store_dwordx4 v[12:15], v10, s[%d:%d], s70 offen offset:%d" % (SRD_WS, SRD_WS+3, i*4))
        a("s_nop 1")

VL_X, VL_V, VL_W, VL_O, VL_P = 8, 12, 16, 18, 20
def loader_setup(a, cfg):
    a.c("loader: per-lane source offsets")
    a("v_lshrrev_b32 v1, 3, v0")
    a("v_and_b32 v2, 7, v0")
    a("v_lshrrev_b32 v3, 1, v1")
    a("v_xor_b32 v4, v2, v3")
    a("v_xor_b32 v5, 4, v4")
    a("v_lshlrev_b32 v4, 4, v4")
    a("v_lshlrev_b32 v5, 4, v5")
    a("v_mul_u32_u24 v6, 1280, v1")
    a("v_mul_u32_u24 v7, 384, v1")
    for i in range(4):
        a("v_add_u32 v%d, v6, v%d" % (VL_X+i, 4 + (i & 1)))
        a("v_add_u32 v%d, v7, v%d" % (VL_V+i, 4 + (i & 1)))
        if i:
            a("v_add_u32 v%d, %d, v%d" % (VL_X+i, 8*i*1280, VL_X+i))
            a("v_add_u32 v%d, %d, v%d" % (VL_V+i, 8*i*384, VL_V+i))
    a("v_and_b32 v3, 1, v3")
    a("v_lshlrev_b32 v3, 2, v3")
    a("v_xor_b32 v3, v2, v3")
    a("v_lshlrev_b32 v3, 4, v3")
    a("v_mul_u32_u24 v7, 12288, v1")
    a("v_add_u32 v%d, v7, v3" % VL_W)
    a("v_add_u32 v%d, %d, v%d" % (VL_W+1, 8*12288, VL_W))
    a("v_add_u32 v%d, v6, v3" % VL_O)
    a("v_add_u32 v%d, %d, v%d" % (VL_O+1, 8*1280, VL_O))
    a("v_lshrrev_b32 v1, 2, v0")
    a("v_and_b32 v2, 3, v0")
    a("v_mul_u32_u24 v1, 1280, v1")
    a("v_lshlrev_b32 v2, 4, v2")
    a("v_add_u32 v%d, v1, v2" % VL_P)
    a("s_lshl_b32 s%d, s%d, 12" % (S_M4, S_W))
    a("s_mul_i32 s%d, s%d, 6144" % (S_M6, S_W))
    a("s_lshl_b32 s%d, s%d, 10" % (S_MP, S_W))
    a("s_lshl_b32 s%d, s%d, 2" % (S_T0, S_BG))
    a("s_add_u32 s%d, s%d, s%d" % (S_T0, S_T0, S_W))
    a("s_mul_i32 s%d, s%d, %d" % (S_BX, S_T0, 32*1280))
    a("s_mul_i32 s%d, s%d, %d" % (S_BKV, S_T0, 32*12288))
    a("s_mul_i32 s%d, s%d, %d" % (S_BW, S_W, 16*12288))
    a("s_mul_i32 s%d, s%d, 384" % (S_T0, S_H))
    a("s_add_u32 s%d, s%d, s%d" % (S_BW, S_BW, S_T0))
    if cfg.rot:
        a("s_lshl_b32 s%d, s%d, 1" % (S_C, S_BG))
        a("s_add_u32 s%d, s%d, s%d" % (S_C, S_C, S_HH))
        a("s_mul_i32 s%d, s%d, 5" % (S_C, S_C))
        a("s_lshr_b32 s%d, s%d, 2" % (S_C, S_C))
        a("s_sub_u32 s%d, s%d, 10" % (S_T0, S_C))
        a("s_cmp_ge_u32 s%d, 10" % S_C)
        a("s_cselect_b32 s%d, s%d, s%d" % (S_C, S_T0, S_C))
    else:
        a("s_mov_b32 s%d, 0" % S_C)
    a("s_mul_i32 s%d, s%d, 320" % (S_T0, S_NT))
    a("s_and_b32 s%d, s%d, 1" % (S_T1, S_NT))
    a("s_lshl_b32 s%d, s%d, 6" % (S_T2, S_T1))
    a("s_add_u32 s%d, s%d, s%d" % (S_CF, S_T0, S_T2))
    a("s_xor_b32 s%d, s%d, 1" % (S_T1, S_T1))
    a("s_lshl_b32 s%d, s%d, 8" % (S_T2, S_T1))
    a("s_add_u32 s%d, s%d, s%d" % (S_CP, S_T0, S_T2))
    a("s_mul_i32 s%d, s%d, %d" % (S_T0, S_W, 16*1280))
    a("s_add_u32 s%d, s%d, s%d" % (S_CF, S_CF, S_T0))
    a("s_add_u32 s%d, s%d, s%d" % (S_CP, S_CP, S_T0))

def dma(a, cfg, mbase, mconst, voff, srd, soff, imm=0):
    assert mconst - imm >= 0
    a("s_add_u32 m0, s%d, %d" % (mbase, mconst - imm))
    a("s_nop 0")
    a("buffer_load_dwordx4 v%d, s[%d:%d], s%d offen %s%s lds" % (voff, srd, srd+3, soff, ("offset:%d " % imm) if imm else "", cfg.pol))

def stage_count(st): return {"p1": 10, "ka": 8, "kb": 4, "p2": 9}[st[0]]

def loader_issue(a, cfg, st, slot, fused=False):
    base = slot * SLOT
    if st[0] == "p1":
        a("s_lshl_b32 s%d, s%d, 7" % (S_SX, S_C))
        a("s_add_u32 s%d, s%d, s%d" % (S_SX, S_SX, S_BX))
        a("s_mul_i32 s%d, s%d, %d" % (S_SW, S_C, 64*12288))
        a("s_add_u32 s%d, s%d, s%d" % (S_SW, S_SW, S_BW))
        for b in range(2):
            for j in range(3):
                dma(a, cfg, S_M6, base + 16384 + b*3072 + j*1024, VL_W+b, SRD_WQ, S_SW, j*128)
        for i in range(4):
            dma(a, cfg, S_M4, base + i*1024, VL_X+i, SRD_X, S_SX)
        if not fused:
            a("s_add_u32 s%d, s%d, 1" % (S_C, S_C))
            a("s_cmp_eq_u32 s%d, 10" % S_C)
            a("s_cselect_b32 s%d, 0, s%d" % (S_C, S_C))
    elif st[0] in ("ka", "kb"):
        a("s_mul_i32 s%d, s%d, 12288" % (S_SV, S_H))
        a("s_add_u32 s%d, s%d, s%d" % (S_SV, S_SV, S_BKV))
        for n, c in enumerate((0, 1) if st[0] == "ka" else (2,)):
            for i in range(4):
                dma(a, cfg, S_M4, base + n*16384 + i*1024, VL_V+i, SRD_K, S_SV, c*128)
    else:
        _, hi, c = st
        if fused:
            a("s_lshl_b32 s%d, s%d, 2" % (S_HI, S_HG))
            if hi: a("s_add_u32 s%d, s%d, %d" % (S_HI, S_HI, hi))
            a("s_mul_i32 s%d, s%d, 12288" % (S_SV, S_HI))
            a("s_add_u32 s%d, s%d, s%d" % (S_SV, S_SV, S_BKV))
            if c: a("s_add_u32 s%d, s%d, %d" % (S_SV, S_SV, c*128))
            a("s_mul_i32 s%d, s%d, %d" % (S_T0, S_HI, 192*1280))
            if c: a("s_add_u32 s%d, s%d, %d" % (S_T0, S_T0, c*64*1280))
            a("s_add_u32 s%d, s%d, s%d" % (S_SO, S_T0, S_CF))
            a("s_add_u32 s%d, s%d, s%d" % (S_SP, S_T0, S_CP))
        elif c == 0:
            if cfg.rot:
                a("s_add_u32 s%d, s%d, %d" % (S_HI, S_OWN, hi))
                a("s_and_b32 s%d, s%d, 3" % (S_HI, S_HI))
            else:
                a("s_mov_b32 s%d, %d" % (S_HI, hi))
            a("s_lshl_b32 s%d, s%d, 2" % (S_T0, S_HG))
            a("s_add_u32 s%d, s%d, s%d" % (S_HI, S_HI, S_T0))
            a("s_mul_i32 s%d, s%d, 12288" % (S_SV, S_HI))
            a("s_add_u32 s%d, s%d, s%d" % (S_SV, S_SV, S_BKV))
            a("s_mul_i32 s%d, s%d, %d" % (S_T0, S_HI, 192*1280))
            a("s_add_u32 s%d, s%d, s%d" % (S_SO, S_T0, S_CF))
            a("s_add_u32 s%d, s%d, s%d" % (S_SP, S_T0, S_CP))
        else:
            a("s_add_u32 s%d, s%d, %d" % (S_SO, S_SO, 64*1280))
            a("s_add_u32 s%d, s%d, %d" % (S_SP, S_SP, 64*1280))
            a("s_add_u32 s%d, s%d, 128" % (S_SV, S_SV))
        for b in range(2):
            for j in range(2):
                dma(a, cfg, S_M4, base + 16384 + b*2048 + j*1024, VL_O+b, SRD_WO, S_SO, j*128)
        dma(a, cfg, S_MP, base + 32768, VL_P, SRD_WO, S_SP)
        for i in range(4):
            dma(a, cfg, S_M4, base + i*1024, VL_V+i, SRD_V, S_SV)

def loader_run(a, cfg, stages, extra_barriers):
    n = len(stages)
    issued = 0
    for s in range(min(NSLOT, n)):
        loader_issue(a, cfg, stages[s], s % NSLOT); issued += 1
    for s in range(n):
        cnt = sum(stage_count(stages[k]) for k in range(s+1, issued))
        a("s_waitcnt vmcnt(%d)" % cnt)
        a("s_barrier")
        if s >= 1 and issued < n:
            assert issued == s + NSLOT - 1
            loader_issue(a, cfg, stages[issued], issued % NSLOT); issued += 1
    for _ in range(extra_barriers):
        a("s_barrier")

V_AX = 2
V_AE, V_AO, V_A4 = 6, 7, 8
V_L16 = 9
V_T = 10
V_B = 16
V_A = 24
V_P = 48
V_K = 56
V_S = 104
V_Q = 160
V_VW = 56
V_VB = 136
V_OUT = 176

def compute_setup(a, cfg):
    a.c("compute: LDS read addresses")
    a("v_and_b32 v10, 31, v0")
    a("v_lshrrev_b32 v11, 5, v0")
    a("v_lshrrev_b32 v12, 1, v10")
    a("v_and_b32 v12, 7, v12")
    a("v_xor_b32 v12, v12, v11")
    a("v_lshlrev_b32 v12, 4, v12")
    a("v_lshl_add_u32 v12, v10, 7, v12")
    a("s_lshl_b32 s%d, s%d, 12" % (S_T0, S_W))
    a("v_add_u32 v%d, s%d, v12" % (V_AX, S_T0))
    for s in range(1, 4):
        a("v_xor_b32 v%d, %d, v%d" % (V_AX+s, 32*s, V_AX))
    a("v_lshlrev_b32 v%d, 4, v0" % V_L16)
    a("s_mov_b32 s%d, %d" % (S_KSLOT, SLOT))

def compute_tr_addr(a, phase, slot_sgpr=None):
    a("v_bfe_u32 v10, v0, 2, 2")
    a("v_bfe_u32 v11, v0, 4, 1")
    a("v_lshrrev_b32 v12, 5, v0")
    a("v_and_b32 v13, 1, v0")
    a("v_bfe_u32 v14, v0, 1, 1")
    a("v_lshl_add_u32 v13, v13, 1, v14")
    a("v_lshlrev_b32 v13, 3, v13")
    a("v_lshl_add_u32 v13, v11, 5, v13")
    a("v_lshrrev_b32 v14, 1, v10")
    a("v_mul_u32_u24 v15, %d, v12" % (3072 if phase == 1 else 2048))
    a("v_lshl_add_u32 v15, v10, 7, v15")
    a("v_add_u32 v15, v15, v13")
    a("v_add_u32 v15, 16384, v15")
    a("v_lshl_add_u32 v%d, v14, 6, v15" % V_AE)
    a("v_xor_b32 v%d, 64, v%d" % (V_AO, V_AE))
    if phase == 2:
        a("v_lshlrev_b32 v15, 9, v12")
        a("v_lshl_add_u32 v15, v10, 6, v15")
        a("v_add_u32 v15, v15, v13")
        a("v_add_u32 v%d, 32768, v15" % V_A4)
    if slot_sgpr is not None:
        for r in (V_AE, V_AO) + ((V_A4,) if phase == 2 else ()):
            a("v_add_u32 v%d, s%d, v%d" % (r, slot_sgpr, r))

def advance_slot(a, phase):
    a("s_add_u32 s%d, s%d, %d" % (S_SLOT, S_SLOT, SLOT))
    a("s_cmp_eq_u32 s%d, %d" % (S_SLOT, LDS))
    a("s_cselect_b32 s%d, 0, s%d" % (S_SLOT, S_SLOT))
    a("s_cselect_b32 s%d, %d, s%d" % (S_DELTA, SLOT - LDS, S_KSLOT))
    for r in list(range(V_AX, V_AX+4)) + [V_AE, V_AO] + ([V_A4] if phase == 2 else []):
        a("v_add_u32 v%d, s%d, v%d" % (r, S_DELTA, r))

def rd_b(a, s, off=0, dst=None):
    d = V_B + 4*(s & 1) if dst is None else dst
    a.ds("ds_read_b128 %s, v%d offset:%d" % (vr(d, 4), V_AX+s, off), R(d, 4))
def rd_a(a, phase, s, t):
    d = V_A + 4*t
    for jj in range(2):
        if phase == 1:
            ad, off = (V_AE, V_AO)[t & 1], s*6144 + (t >> 1)*1024 + jj*512
        elif t < 4:
            ad, off = (V_AE, V_AO)[t & 1], s*4096 + (t >> 1)*1024 + jj*512
        else:
            ad, off = V_A4, s*1024 + jj*256
        a.ds("ds_read_b64_tr_b16 %s, v%d offset:%d" % (vr(d+2*jj, 2), ad, off), R(d+2*jj, 2))
def mfma(a, d, x, y, c):
    a("v_mfma_f32_32x32x16_bf16 %s, %s, %s, %s" % (vr(d, 16), vr(x, 4), vr(y, 4), c if isinstance(c, str) else vr(c, 16)))

def first_reads(a, phase):
    rd_b(a, 0)
    for t in range(6 if phase == 1 else 5): rd_a(a, phase, 0, t)

def gemm_stage(a, cfg, phase, zero_first=False, tail=None, fill=None):
    nt = 6 if phase == 1 else 5
    bar = cfg.bar1 if phase == 1 else cfg.bar2
    for s in range(4):
        b = V_B + 4*(s & 1)
        for t in range(nt):
            a.need(R(V_A+4*t, 4) + R(b, 4))
            if phase == 1:
                mfma(a, V_Q+16*t, V_A+4*t, b, V_Q+16*t)
            else:
                mfma(a, V_VW+16*t, b, V_A+4*t, "0" if (zero_first and s == 0) else V_VW+16*t)
            if s < 3:
                if t == 0: rd_b(a, s+1)
                rd_a(a, phase, s+1, t)
            else:
                if t == bar:
                    a.drain()
                    a("s_barrier")
                    advance_slot(a, phase)
                    if tail is None:
                        rd_b(a, 0)
                        for tt in range(bar+1): rd_a(a, phase, 0, tt)
                if tail is not None:
                    if t >= bar: tail(t)
                elif t > bar:
                    rd_a(a, phase, 0, t)
            if fill and (s, t) in fill:
                for x in fill[(s, t)]: a(x)

def compute_phase1(a, cfg):
    compute_tr_addr(a, 1)
    for r in range(V_Q, V_Q+96): a("v_mov_b32 v%d, 0" % r)
    a("s_mov_b32 s%d, 0" % S_SLOT)
    a("s_mov_b32 s%d, 9" % S_CNT)
    stamp(a, cfg, 2)
    a("s_barrier")
    stamp(a, cfg, 3)
    first_reads(a, 1)
    q0 = list(a.q)
    a("L_p1_%s:" % a.tag)
    gemm_stage(a, cfg, 1)
    assert a.q == q0, (a.q, q0)
    a("s_sub_u32 s%d, s%d, 1" % (S_CNT, S_CNT))
    a("s_cmp_lg_u32 s%d, 0" % S_CNT)
    a("s_cbranch_scc1 L_p1_%s" % a.tag)
    if cfg.stamp:
        stamp(a, cfg, 4);
    def ktail(t):
        if t == cfg.bar1:
            for f in range(8):
                rd_b(a, f & 3, (f >> 2)*16384, V_K + 4*f)
    gemm_stage(a, cfg, 1, tail=ktail)
    a.drain()
    a("s_barrier")
    advance_slot(a, 1)
    for f in range(8, 12): rd_b(a, f & 3, 0, V_K + 4*f)
    def cvt_tile(base):
        for j in range(8): a("v_cvt_pk_bf16_f32 v%d, v%d, v%d" % (base+j, base+2*j, base+2*j+1))
    cvt_tile(V_Q)
    for t in range(6):
        if t < 5: cvt_tile(V_Q + 16*(t+1))
        else: a("s_nop 1")
        for u in range(2):
            f = 2*t + u
            a.need(R(V_K+4*f, 4))
            mfma(a, V_S, V_K+4*f, V_Q+16*t+4*u, "0" if f == 0 else V_S)

def softmax_store(a, cfg):
    S = V_S
    a("s_mov_b32 s%d, 0x3dd53b95" % S_SC)
    a("s_nop 10")
    a("v_max3_f32 v10, v%d, v%d, v%d" % (S, S+1, S+2))
    for i in range(3, 15, 2): a("v_max3_f32 v10, v10, v%d, v%d" % (S+i, S+i+1))
    a("v_max_f32 v10, v10, v%d" % (S+15))
    a("v_mov_b32 v11, v10")
    a("s_nop 1")
    a("v_permlane32_swap_b32 v10, v11")
    a("v_max_f32 v10, v10, v11")
    a("v_mul_f32 v10, s%d, v10" % S_SC)
    for i in range(16): a("v_fma_f32 v%d, v%d, s%d, -v10" % (S+i, S+i, S_SC))
    for i in range(16): a("v_exp_f32 v%d, v%d" % (S+i, S+i))
    a("v_add_f32 v10, v%d, v%d" % (S, S+1))
    a("v_add_f32 v11, v%d, v%d" % (S+2, S+3))
    for i in range(4, 16, 2):
        a("v_add_f32 v10, v10, v%d" % (S+i))
        a("v_add_f32 v11, v11, v%d" % (S+i+1))
    a("v_add_f32 v10, v10, v11")
    a("v_mov_b32 v11, v10")
    a("s_nop 1")
    a("v_permlane32_swap_b32 v10, v11")
    a("v_add_f32 v10, v10, v11")
    a("v_rcp_f32 v10, v10")
    a("s_nop 0")
    for i in range(16): a("v_mul_f32 v%d, v%d, v10" % (S+i, S+i))
    for j in range(8): a("v_cvt_pk_bf16_f32 v%d, v%d, v%d" % (V_P+j, S+2*j, S+2*j+1))
    unit_off(a, S_PS, S_H)
    pol = "sc1" if cfg.mode == "fused" else ""
    a("buffer_store_dwordx4 %s, v%d, s[%d:%d], s%d offen %s" % (vr(V_P, 4), V_L16, SRD_WS, SRD_WS+3, S_PS, pol))
    a("buffer_store_dwordx4 %s, v%d, s[%d:%d], s%d offen offset:1024 %s" % (vr(V_P+4, 4), V_L16, SRD_WS, SRD_WS+3, S_PS, pol))

def unit_off(a, dst, hreg):
    a("s_lshl_b32 s%d, s%d, 2" % (S_T0, S_P))
    a("s_add_u32 s%d, s%d, s%d" % (S_T0, S_T0, S_BG))
    a("s_lshl_b32 s%d, s%d, 2" % (S_T0, S_T0))
    a("s_add_u32 s%d, s%d, s%d" % (S_T0, S_T0, S_W))
    a("s_lshl_b32 s%d, s%d, 5" % (S_T0, S_T0))
    a("s_add_u32 s%d, s%d, s%d" % (S_T0, S_T0, hreg))
    a("s_lshl_b32 s%d, s%d, 11" % (dst, S_T0))
    if WS_P: a("s_add_u32 s%d, s%d, %d" % (dst, dst, WS_P))

def compute_phase2(a, cfg):
    for r in range(V_OUT, V_OUT+80): a("v_mov_b32 v%d, 0" % r)
    a("s_mov_b32 s%d, 0" % S_CNT)
    stamp(a, cfg, 2)
    a("s_barrier")
    stamp(a, cfg, 3)
    first_reads(a, 2)
    q0 = list(a.q)
    a("L_p2_%s:" % a.tag)
    if cfg.rot:
        a("s_add_u32 s%d, s%d, s%d" % (S_HI, S_OWN, S_CNT))
        a("s_and_b32 s%d, s%d, 3" % (S_HI, S_HI))
    else:
        a("s_mov_b32 s%d, s%d" % (S_HI, S_CNT))
    a("s_lshl_b32 s%d, s%d, 2" % (S_T1, S_HG))
    a("s_add_u32 s%d, s%d, s%d" % (S_HI, S_HI, S_T1))
    unit_off(a, S_PS, S_HI)
    a("buffer_load_dwordx4 %s, v%d, s[%d:%d], s%d offen" % (vr(V_P, 4), V_L16, SRD_WS, SRD_WS+3, S_PS))
    a("buffer_load_dwordx4 %s, v%d, s[%d:%d], s%d offen offset:1024" % (vr(V_P+4, 4), V_L16, SRD_WS, SRD_WS+3, S_PS))
    for c in range(3):
        gemm_stage(a, cfg, 2, zero_first=(c == 0))
    head_epilogue(a)
    assert a.q == q0, (a.q, q0)
    a("s_add_u32 s%d, s%d, 1" % (S_CNT, S_CNT))
    a("s_cmp_lg_u32 s%d, 4" % S_CNT)
    a("s_cbranch_scc1 L_p2_%s" % a.tag)

def head_epilogue(a):
    def cvt_tile(base):
        for j in range(8): a("v_cvt_pk_bf16_f32 v%d, v%d, v%d" % (base+j, base+2*j, base+2*j+1))
    cvt_tile(V_VW)
    a("s_waitcnt vmcnt(0)")
    for t in range(5):
        if t < 4: cvt_tile(V_VW + 16*(t+1))
        for u in range(2):
            mfma(a, V_OUT+16*t, V_VW+16*t+4*u, V_P+4*u, V_OUT+16*t)

def store_partials(a, cfg):
    a("s_lshl_b32 s%d, s%d, 2" % (S_T0, S_P))
    a("s_add_u32 s%d, s%d, s%d" % (S_T0, S_T0, S_BG))
    a("s_lshl_b32 s%d, s%d, 2" % (S_T0, S_T0))
    a("s_add_u32 s%d, s%d, s%d" % (S_T0, S_T0, S_NT))
    a("s_mul_i32 s%d, s%d, 327680" % (S_T0, S_T0))
    a("s_mul_i32 s%d, s%d, 5120" % (S_T1, S_HG))
    a("s_add_u32 s%d, s%d, s%d" % (S_T0, S_T0, S_T1))
    a("s_mul_i32 s%d, s%d, 81920" % (S_T1, S_W))
    a("s_add_u32 s%d, s%d, s%d" % (S_T0, S_T0, S_T1))
    a("s_add_u32 s%d, s%d, %d" % (S_T0, S_T0, WS_PART))
    a("s_add_u32 s%d, s%d, 4096" % (S_T1, S_T0))
    a("v_bfe_u32 v10, v0, 4, 1")
    a("v_mul_u32_u24 v10, 40960, v10")
    a("v_and_b32 v11, 15, v0")
    a("v_lshrrev_b32 v12, 5, v0")
    a("v_lshl_add_u32 v11, v12, 4, v11")
    a("v_lshl_add_u32 v10, v11, 4, v10")
    pol = "sc1" if cfg.mode == "fused" else ""
    for t in range(5):
        base = V_OUT + 16*t
        for j in range(8): a("v_cvt_pk_bf16_f32 v%d, v%d, v%d" % (base+j, base+2*j, base+2*j+1))
        for u in range(2):
            off = (2*t+u)*512
            so = S_T0 if off < 4096 else S_T1
            a("buffer_store_dwordx4 %s, v10, s[%d:%d], s%d offen offset:%d %s" % (vr(base+4*u, 4), SRD_WS, SRD_WS+3, so, off % 4096, pol))

def reduce_stage(a, cfg):
    a("s_lshl_b32 s%d, s%d, 2" % (S_T0, S_P))
    a("s_add_u32 s%d, s%d, s%d" % (S_T0, S_T0, S_BG))
    a("s_lshl_b32 s%d, s%d, 2" % (S_T0, S_T0))
    a("s_add_u32 s%d, s%d, s%d" % (S_T0, S_T0, S_NT))
    a("s_mul_i32 s%d, s%d, 327680" % (S_T0, S_T0))
    a("s_mul_i32 s%d, s%d, 40960" % (S_T1, S_HG))
    a("s_add_u32 s%d, s%d, s%d" % (S_T0, S_T0, S_T1))
    a("s_lshl_b32 s%d, s%d, 10" % (S_T1, S_W8))
    a("s_add_u32 s%d, s%d, s%d" % (S_T0, S_T0, S_T1))
    a("s_add_u32 s%d, s%d, %d" % (S_T0, S_T0, WS_PART))
    a("v_lshlrev_b32 v9, 4, v0")
    pol = "sc1" if cfg.mode == "fused" else ""
    for k in range(8):
        a("buffer_load_dwordx4 %s, v9, s[%d:%d], s%d offen %s" % (vr(16+4*k, 4), SRD_WS, SRD_WS+3, S_T0, pol))
        if k < 7: a("s_add_u32 s%d, s%d, 5120" % (S_T0, S_T0))
    a("s_lshl_b32 s%d, s%d, 3" % (S_T0, S_BG))
    a("s_add_u32 s%d, s%d, s%d" % (S_T0, S_T0, S_HG))
    a("s_mul_i32 s%d, s%d, %d" % (S_T0, S_T0, 16*2560))
    a("s_mul_i32 s%d, s%d, 1280" % (S_T1, S_P))
    a("s_add_u32 s%d, s%d, s%d" % (S_T0, S_T0, S_T1))
    a("s_mul_i32 s%d, s%d, 320" % (S_T1, S_NT))
    a("s_add_u32 s%d, s%d, s%d" % (S_T0, S_T0, S_T1))
    a("s_and_b32 s%d, s%d, 1" % (S_T1, S_NT))
    a("s_add_u32 s%d, s%d, s%d" % (S_T1, S_T1, S_W8))
    a("s_cmp_eq_u32 s%d, 5" % S_T1)
    a("s_cselect_b32 s%d, 0, s%d" % (S_T1, S_T1))
    a("s_lshl_b32 s%d, s%d, 6" % (S_T1, S_T1))
    a("s_add_u32 s%d, s%d, s%d" % (S_T0, S_T0, S_T1))
    a("v_and_b32 v10, 15, v0")
    a("v_mul_u32_u24 v10, 2560, v10")
    a("v_lshrrev_b32 v11, 4, v0")
    a("v_lshl_add_u32 v10, v11, 4, v10")
    a("s_mov_b32 s%d, 0xffff0000" % S_T2)
    for k in range(8):
        a("s_waitcnt vmcnt(%d)" % (7-k))
        for j in range(4):
            src = 16+4*k+j
            if k == 0:
                a("v_lshlrev_b32 v%d, 16, v%d" % (56+2*j, src))
                a("v_and_b32 v%d, s%d, v%d" % (57+2*j, S_T2, src))
            else:
                a("v_lshlrev_b32 v12, 16, v%d" % src)
                a("v_and_b32 v13, s%d, v%d" % (S_T2, src))
                a("v_add_f32 v%d, v%d, v12" % (56+2*j, 56+2*j))
                a("v_add_f32 v%d, v%d, v13" % (57+2*j, 57+2*j))
    for j in range(4): a("v_cvt_pk_bf16_f32 v%d, v%d, v%d" % (12+j, 56+2*j, 57+2*j))
    a("buffer_store_dwordx4 v[12:15], v10, s[%d:%d], s%d offen" % (SRD_OUT, SRD_OUT+3, S_T0))

P1_STAGES = [("p1", i) for i in range(10)] + [("ka",), ("kb",)]
P2_STAGES = [("p2", i, c) for i in range(4) for c in range(3)]

def kernel_text(label, body, nv):
    return (".globl %s\n.p2align 8\n.type %s,@function\n%s:\n" % (label, label, label)) + body

def kd(label, nv):
    return """.amdhsa_kernel %s
  .amdhsa_next_free_vgpr %d
  .amdhsa_next_free_sgpr 102
  .amdhsa_accum_offset %d
  .amdhsa_group_segment_fixed_size 0
  .amdhsa_kernarg_size 104
  .amdhsa_user_sgpr_count 2
  .amdhsa_user_sgpr_kernarg_segment_ptr 1
  .amdhsa_system_sgpr_workgroup_id_x 1
.end_amdhsa_kernel
""" % (label, nv, nv)

def gen_multi(cfg):
    a = Asm(); a.tag = "k1"
    prologue(a, cfg); mag_start(a, cfg)
    a("s_cmp_ge_u32 s%d, 4" % S_W8); a("s_cbranch_scc1 L_load_k1")
    compute_setup(a, cfg); compute_phase1(a, cfg); stamp(a, cfg, 5); softmax_store(a, cfg)
    if cfg.stamp:
        stamp(a, cfg, 6); a("s_waitcnt vmcnt(0)"); stamp(a, cfg, 7); stamp(a, cfg, 8, True); stamp_flush(a, cfg, 0)
    if cfg.magk == 1: mag_end(a, cfg)
    a("s_endpgm")
    a("L_load_k1:")
    loader_setup(a, cfg); loader_run(a, cfg, P1_STAGES, 0)
    a("L_exit_k1:"); a("s_endpgm")
    k1 = a.text()
    a = Asm(); a.tag = "k2"
    prologue(a, cfg)
    a("s_cmp_ge_u32 s%d, 4" % S_W8); a("s_cbranch_scc1 L_load_k2")
    compute_setup(a, cfg); compute_tr_addr(a, 2); a("s_mov_b32 s%d, 0" % S_SLOT)
    compute_phase2(a, cfg); stamp(a, cfg, 5); store_partials(a, cfg)
    if cfg.stamp:
        stamp(a, cfg, 6); a("s_waitcnt vmcnt(0)"); stamp(a, cfg, 7); stamp(a, cfg, 8, True); stamp_flush(a, cfg, 1)
    a("s_endpgm")
    a("L_load_k2:")
    loader_setup(a, cfg); loader_run(a, cfg, P2_STAGES, 1)
    a("L_exit_k2:"); a("s_endpgm")
    k2 = a.text()
    a = Asm(); a.tag = "k3"
    prologue(a, cfg)
    reduce_stage(a, cfg)
    if cfg.stamp:
        stamp(a, cfg, 6); a("s_waitcnt vmcnt(0)"); stamp(a, cfg, 7); stamp(a, cfg, 8, True); stamp_flush(a, cfg, 2)
    if cfg.magk == 3: mag_end(a, cfg)
    a("L_exit_k3:"); a("s_endpgm")
    k3 = a.text()
    hdr = open("cdna_kernels/%s.s.ref" % NAME).read().split("; Override launch")[0]
    out = hdr
    out += "; @launch kernel=p1_kernel grid=(256,1,1) block=(512,1,1) lds=%d\n" % LDS
    out += "; @launch kernel=p2_kernel grid=(256,1,1) block=(512,1,1) lds=%d\n" % LDS
    out += "; @launch kernel=p3_kernel grid=(256,1,1) block=(320,1,1) lds=0\n"
    for _ in range(cfg.extra): out += "; @launch kernel=p3_kernel grid=(256,1,1) block=(320,1,1) lds=0\n"
    out += '.amdgcn_target "amdgcn-amd-amdhsa--gfx950"\n.text\n'
    out += kernel_text("p1_kernel", k1, 256) + kernel_text("p2_kernel", k2, 256) + kernel_text("p3_kernel", k3, 64)
    out += '.section .rodata,"a"\n.p2align 6\n' + kd("p1_kernel", 256) + ".p2align 6\n" + kd("p2_kernel", 256) + ".p2align 6\n" + kd("p3_kernel", 64)
    return out


WS_EPOCH = 0x1000000
WS_PFLAG = 0x1010000
WS_RFLAG = 0x1020000
S_TAG, S_SET, S_PF, S_EP = 32, 33, 34, 35
S_J, S_ORD = 64, 66
S_SPIN = 70
SPIN_MAX = 200000

def fused_prologue(a, cfg):
    a("s_cmp_ge_u32 s2, 256")
    a("s_cbranch_scc1 L_exit")
    stamp(a, cfg, 0, True); stamp(a, cfg, 1)
    a("s_and_b32 s%d, s2, 7" % S_T0)
    a("s_lshr_b32 s%d, s%d, 2" % (S_P, S_T0))
    a("s_mul_i32 s%d, s%d, 40" % (S_T1, S_P))
    a("s_load_dwordx2 s[88:89], s[0:1], 96")
    a("s_load_dwordx8 s[76:83], s[0:1], s%d" % S_T1)
    a("s_load_dwordx2 s[84:85], s[0:1], s%d offset:32" % S_T1)
    a("s_load_dwordx2 s[86:87], s[0:1], 80")
    a("v_lshrrev_b32 v1, 6, v0")
    a("v_and_b32 v0, 63, v0")
    a("s_and_b32 s%d, s%d, 3" % (S_T0, S_T0))
    a("v_readfirstlane_b32 s%d, v1" % S_W8)
    a("s_lshr_b32 s%d, s2, 3" % S_T1)
    a("s_and_b32 s%d, s%d, 3" % (S_BG, S_T1))
    a("s_lshr_b32 s%d, s%d, 2" % (S_HH, S_T1))
    a("s_lshl_b32 s%d, s%d, 3" % (S_H, S_T0))
    a("s_add_u32 s%d, s%d, s%d" % (S_H, S_H, S_HH))
    a("s_lshr_b32 s%d, s%d, 2" % (S_HG, S_H))
    a("s_and_b32 s%d, s%d, 3" % (S_OWN, S_HH))
    a("s_sub_u32 s%d, s%d, s%d" % (S_NT, S_OWN, S_BG))
    a("s_and_b32 s%d, s%d, 3" % (S_NT, S_NT))
    a("s_and_b32 s%d, s%d, 3" % (S_W, S_W8))
    a("s_lshl_b32 s%d, s%d, 2" % (S_SET, S_P))
    a("s_add_u32 s%d, s%d, s%d" % (S_SET, S_SET, S_BG))
    a("s_lshl_b32 s%d, s%d, 8" % (S_EP, S_SET))
    a("s_add_u32 s%d, s%d, %d" % (S_EP, S_EP, WS_EPOCH))
    a("s_cmp_lt_u32 s%d, 4" % S_W8)
    a("s_cbranch_scc1 L_compute")

def mk_srd(a, srd, ptr, nb):
    a("s_mov_b32 s%d, s%d" % (srd, ptr))
    a("s_mov_b32 s%d, s%d" % (srd+1, ptr+1))
    a("s_mov_b32 s%d, %d" % (srd+2, nb))
    a("s_mov_b32 s%d, 0x00020000" % (srd+3))

ORDERS = [[0,1,4,2,3,5,8,6,7,9], [0,1,2,5,3,4,6,9,7,8], [0,2,1,3,6,4,5,7,8,9], [0,3,1,2,4,7,5,6,8,9]]

def fused_loader(a, cfg):
    loader_setup(a, cfg)
    orders = ORDERS if cfg.skew else [list(range(10))]*4
    vals = [sum(c << (4*i) for i, c in enumerate(o)) for o in orders]
    a("s_add_u32 s%d, s%d, s%d" % (S_J, S_BG, S_HH))
    a("s_and_b32 s%d, s%d, 3" % (S_J, S_J))
    a("s_mov_b32 s%d, 0x%x" % (S_ORD, vals[0] & 0xffffffff)); a("s_mov_b32 s%d, 0x%x" % (S_ORD+1, vals[0] >> 32))
    for j in range(1, 4):
        a("s_cmp_eq_u32 s%d, %d" % (S_J, j))
        a("s_cselect_b32 s%d, 0x%x, s%d" % (S_ORD, vals[j] & 0xffffffff, S_ORD))
        a("s_cselect_b32 s%d, 0x%x, s%d" % (S_ORD+1, vals[j] >> 32, S_ORD+1))
    a("s_waitcnt lgkmcnt(0)")
    mk_srd(a, SRD_WQ, 82, 7864320); mk_srd(a, SRD_X, 76, 655360)
    stages = P1_STAGES + P2_STAGES
    n = len(stages)
    order = []
    def issue(pos):
        st = stages[pos]
        if st[0] == "p1":
            a("s_and_b32 s%d, s%d, 15" % (S_C, S_ORD))
            a("s_lshr_b64 s[%d:%d], s[%d:%d], 4" % (S_ORD, S_ORD+1, S_ORD, S_ORD+1))
        loader_issue(a, cfg, st, pos % NSLOT, fused=True)
        order.append(pos)
    def wait(pos):
        k = order.index(pos)
        a("s_waitcnt vmcnt(%d)" % sum(stage_count(stages[x]) for x in order[k+1:]))
    issue(0)
    a("s_load_dword s%d, s[88:89], s%d" % (S_TAG, S_EP))
    mk_srd(a, SRD_K, 78, 6291456); mk_srd(a, SRD_V, 80, 6291456); mk_srd(a, SRD_WO, 84, 7864320)
    mk_srd(a, SRD_OUT, 86, 1310720); mk_srd(a, SRD_WS, 88, WS_BYTES)
    for pos in range(1, NSLOT):
        a("s_barrier")
        issue(pos)
    a("s_waitcnt lgkmcnt(0)")
    a("s_add_u32 s%d, s%d, 0x9e3779b9" % (S_TAG, S_TAG))
    T0 = 9
    for t in range(T0):
        wait(t); a("s_barrier")
        if t >= 1: issue(t + 3)
    common = list(order)
    for j in range(4):
        order[:] = common
        if j < 3:
            a("s_cmp_lg_u32 s%d, %d" % (S_OWN, j)); a("s_cbranch_scc1 L_var%d" % (j+1))
        for t in range(T0, n):
            wait(t); a("s_barrier")
            if cfg.var:
                if t + 2 >= 12 and t + 2 < n and (t + 2 - 12) % 4 != j: issue(t + 2)
                if t + 3 < n and (t + 3 - 12) % 4 == j: issue(t + 3)
            else:
                if t + 3 < n: issue(t + 3)
        assert sorted(order) == list(range(n))
        if j < 3:
            a("s_branch L_ldone"); a("L_var%d:" % (j+1))
    a("L_ldone:")
    a("s_barrier")
    stamp(a, cfg, 2)
    fused_reduce(a, cfg)

def fused_reduce(a, cfg):
    a("s_lshl_b32 s%d, s%d, 2" % (S_T0, S_SET))
    a("s_add_u32 s%d, s%d, s%d" % (S_T0, S_T0, S_NT))
    a("s_lshl_b32 s%d, s%d, 9" % (S_PF, S_T0))
    a("s_lshr_b32 s%d, s%d, 1" % (S_T1, S_HG))
    a("s_lshl_b32 s%d, s%d, 7" % (S_T1, S_T1))
    a("s_add_u32 s%d, s%d, s%d" % (S_PF, S_PF, S_T1))
    a("s_add_u32 s%d, s%d, %d" % (S_PF, S_PF, WS_RFLAG))
    a("s_mul_i32 s%d, s%d, 327680" % (S_T0, S_T0))
    a("s_mul_i32 s%d, s%d, 40960" % (S_T1, S_HG))
    a("s_add_u32 s%d, s%d, s%d" % (S_T0, S_T0, S_T1))
    a("s_add_u32 s%d, s%d, %d" % (S_T0, S_T0, WS_PART))
    a("s_mul_i32 s%d, s%d, 80" % (S_T1, S_W))
    a("v_add_u32 v2, s%d, v0" % S_T1)
    a("v_add_u32 v3, 40, v2")
    a("s_lshl_b32 s%d, s%d, 3" % (S_T2, S_BG))
    a("s_add_u32 s%d, s%d, s%d" % (S_T2, S_T2, S_HG))
    a("s_mul_i32 s%d, s%d, %d" % (S_T2, S_T2, 16*2560))
    a("s_mul_i32 s%d, s%d, 1280" % (S_T1, S_P))
    a("s_add_u32 s%d, s%d, s%d" % (S_T2, S_T2, S_T1))
    a("s_mul_i32 s%d, s%d, 320" % (S_T1, S_NT))
    a("s_add_u32 s%d, s%d, s%d" % (S_T2, S_T2, S_T1))
    a("s_and_b32 s%d, s%d, 1" % (S_T1, S_NT))
    for k in range(2):
        q, o = 2+k, 4+k
        a("v_lshrrev_b32 v6, 6, v%d" % q)
        a("v_add_u32 v6, s%d, v6" % S_T1)
        a("v_cmp_eq_u32 vcc, 5, v6")
        a("v_and_b32 v7, 15, v%d" % q)
        a("v_mul_u32_u24 v7, 2560, v7")
        a("v_cndmask_b32 v6, v6, 0, vcc")
        a("v_lshl_add_u32 v7, v6, 6, v7")
        a("v_bfe_u32 v6, v%d, 4, 2" % q)
        a("v_lshl_add_u32 v%d, v6, 4, v7" % o)
        a("v_lshlrev_b32 v%d, 4, v%d" % (q, q))
    a("v_and_b32 v8, 7, v0")
    a("v_lshlrev_b32 v8, 2, v8")
    a("s_mov_b32 s%d, %d" % (S_SPIN, SPIN_MAX))
    a("L_rpoll:")
    a("buffer_load_dword v9, v8, s[%d:%d], s%d offen sc1" % (SRD_WS, SRD_WS+3, S_PF))
    a("s_sub_u32 s%d, s%d, 1" % (S_SPIN, S_SPIN))
    a("s_cmp_eq_u32 s%d, 0" % S_SPIN)
    a("s_cbranch_scc1 L_exit")
    a("s_waitcnt vmcnt(0)")
    a("v_cmp_ne_u32 vcc, s%d, v9" % S_TAG)
    a("s_cbranch_vccnz L_rpoll")
    stamp(a, cfg, 3)
    a("s_mov_b32 exec_hi, 0xff")
    for src in range(8):
        for k in range(2):
            a("buffer_load_dwordx4 %s, v%d, s[%d:%d], s%d offen sc1" % (vr(16+8*src+4*k, 4), 2+k, SRD_WS, SRD_WS+3, S_T0))
        if src < 7: a("s_add_u32 s%d, s%d, 5120" % (S_T0, S_T0))
    a("s_or_b32 s%d, s%d, s%d" % (S_T1, S_HG, S_NT))
    a("s_or_b32 s%d, s%d, s%d" % (S_T1, S_T1, S_W))
    a("s_mov_b32 s%d, 0xffff0000" % S_T3)
    for k in range(2):
        acc = 96 + 8*k
        for src in range(8):
            if k == 0: a("s_waitcnt vmcnt(%d)" % (14 - 2*src))
            for j in range(4):
                r = 16 + 8*src + 4*k + j
                if src == 0:
                    a("v_lshlrev_b32 v%d, 16, v%d" % (acc+2*j, r))
                    a("v_and_b32 v%d, s%d, v%d" % (acc+2*j+1, S_T3, r))
                else:
                    a("v_lshlrev_b32 v10, 16, v%d" % r)
                    a("v_and_b32 v11, s%d, v%d" % (S_T3, r))
                    a("v_add_f32 v%d, v%d, v10" % (acc+2*j, acc+2*j))
                    a("v_add_f32 v%d, v%d, v11" % (acc+2*j+1, acc+2*j+1))
        for j in range(4): a("v_cvt_pk_bf16_f32 v%d, v%d, v%d" % (112+4*k+j, acc+2*j, acc+2*j+1))
        a("buffer_store_dwordx4 %s, v%d, s[%d:%d], s%d offen" % (vr(112+4*k, 4), 4+k, SRD_OUT, SRD_OUT+3, S_T2))
    a("s_cmp_lg_u32 s%d, 0" % S_T1)
    a("s_cbranch_scc1 L_noep")
    a("s_mov_b64 exec, 1")
    a("v_mov_b32 v9, s%d" % S_TAG)
    a("v_mov_b32 v8, 0")
    a("buffer_store_dword v9, v8, s[%d:%d], s%d offen sc1" % (SRD_WS, SRD_WS+3, S_EP))
    a("L_noep:")
    if cfg.stamp:
        a("s_mov_b64 exec, -1")
        stamp(a, cfg, 6); a("s_waitcnt vmcnt(0)"); stamp(a, cfg, 7); stamp(a, cfg, 8, True); stamp_flush(a, cfg, 0)
    mag_end(a, cfg, 4)

def cvt_list(t):
    return ["v_cvt_pk_bf16_f32 v%d, v%d, v%d" % (V_VB+8*t+j, V_VW+16*t+2*j, V_VW+16*t+2*j+1) for j in range(8)]

def pm_block(a, zero):
    for t in range(5):
        for u in range(2):
            mfma(a, V_OUT+16*t, V_VB+8*t+4*u, V_P+4*u, "0" if (zero and u == 0) else V_OUT+16*t)

def load_p(a):
    a("s_lshl_b32 s%d, s%d, 11" % (S_T0, S_CNT))
    a("s_add_u32 s%d, s%d, s%d" % (S_T0, S_T0, S_PS))
    a("buffer_load_dwordx4 %s, v%d, s[%d:%d], s%d offen sc1" % (vr(V_P, 4), V_L16, SRD_WS, SRD_WS+3, S_T0))
    a("buffer_load_dwordx4 %s, v%d, s[%d:%d], s%d offen offset:1024 sc1" % (vr(V_P+4, 4), V_L16, SRD_WS, SRD_WS+3, S_T0))

def fused_compute(a, cfg):
    a("L_compute:")
    compute_setup(a, cfg)
    compute_tr_addr(a, 1)
    for r in range(V_Q, V_Q+96): a("v_mov_b32 v%d, 0" % r)
    a("s_waitcnt lgkmcnt(0)")
    a("s_load_dword s%d, s[88:89], s%d" % (S_TAG, S_EP))
    mk_srd(a, SRD_WS, 88, WS_BYTES)
    mag_start(a, cfg)
    a("s_mov_b32 s%d, 0" % S_SLOT)
    a("s_mov_b32 s%d, 9" % S_CNT)
    for _ in range(NSLOT-1): a("s_barrier")
    a("s_waitcnt lgkmcnt(0)")
    a("s_add_u32 s%d, s%d, 0x9e3779b9" % (S_TAG, S_TAG))
    stamp(a, cfg, 2)
    a("s_barrier")
    stamp(a, cfg, 3)
    first_reads(a, 1)
    q0 = list(a.q)
    a("L_p1:")
    gemm_stage(a, cfg, 1)
    assert a.q == q0
    a("s_sub_u32 s%d, s%d, 1" % (S_CNT, S_CNT))
    a("s_cmp_lg_u32 s%d, 0" % S_CNT)
    a("s_cbranch_scc1 L_p1")
    def ktail(t):
        if t == cfg.bar1:
            for f in range(8): rd_b(a, f & 3, (f >> 2)*16384, V_K + 4*f)
    gemm_stage(a, cfg, 1, tail=ktail)
    if cfg.stamp: stamp(a, cfg, 4)
    a.drain()
    a("s_barrier")
    advance_slot(a, 1)
    for f in range(8, 12): rd_b(a, f & 3, 0, V_K + 4*f)
    def cvt_tile(base):
        for j in range(8): a("v_cvt_pk_bf16_f32 v%d, v%d, v%d" % (base+j, base+2*j, base+2*j+1))
    cvt_tile(V_Q)
    a.drain()
    a("s_barrier")
    advance_slot(a, 1)
    compute_tr_addr(a, 2, S_SLOT)
    for t in range(6):
        if t < 5: cvt_tile(V_Q + 16*(t+1))
        else: a("s_nop 1")
        for u in range(2):
            f = 2*t + u
            mfma(a, V_S, V_K+4*f, V_Q+16*t+4*u, "0" if f == 0 else V_S)
    first_reads(a, 2)
    softmax_store(a, cfg)
    if cfg.stamp: stamp(a, cfg, 5); first_reads(a, 2)
    a("s_lshl_b32 s%d, s%d, 2" % (S_T1, S_HG))
    unit_off(a, S_PS, S_T1)
    a("s_lshl_b32 s%d, s%d, 3" % (S_T0, S_SET))
    a("s_add_u32 s%d, s%d, s%d" % (S_T0, S_T0, S_HG))
    a("s_lshl_b32 s%d, s%d, 9" % (S_PF, S_T0))
    a("s_lshl_b32 s%d, s%d, 7" % (S_T0, S_W))
    a("s_add_u32 s%d, s%d, s%d" % (S_PF, S_PF, S_T0))
    a("s_add_u32 s%d, s%d, %d" % (S_PF, S_PF, WS_PFLAG))
    a("v_and_b32 v14, 3, v0")
    a("v_lshlrev_b32 v14, 2, v14")
    a("s_lshl_b32 s%d, s%d, 2" % (S_T0, S_OWN))
    a("v_mov_b32 v12, s%d" % S_T0)
    a("v_mov_b32 v13, s%d" % S_TAG)
    a("s_mov_b32 s%d, 0" % S_CNT)
    c = [cvt_list(t) for t in range(5)]
    fill_end = {(3, 2): c[0][:6], (3, 3): c[0][6:] + c[1][:4], (3, 4): c[1][4:] + c[2][:2]}
    fill_top = {(0, 0): c[2][2:], (0, 1): c[3][:6], (0, 2): c[3][6:] + c[4][:3], (0, 3): c[4][3:]}
    q0 = list(a.q)
    a("L_p2:")
    gemm_stage(a, cfg, 2, zero_first=True, fill=fill_top)
    a("s_cmp_lg_u32 s%d, 0" % S_CNT)
    a("s_cbranch_scc1 L_p2_a")
    a("s_waitcnt vmcnt(0)")
    a("s_mov_b64 exec, 1")
    a("buffer_store_dword v13, v12, s[%d:%d], s%d offen sc1" % (SRD_WS, SRD_WS+3, S_PF))
    a("s_mov_b64 exec, -1")
    a("L_p2_a:")
    gemm_stage(a, cfg, 2)
    a("s_cmp_eq_u32 s%d, 1" % S_CNT)
    a("s_cbranch_scc1 L_p2_pm0")
    a("s_cmp_lg_u32 s%d, 0" % S_CNT)
    a("s_cbranch_scc1 L_p2_pm")
    a("buffer_load_dword v15, v14, s[%d:%d], s%d offen sc1" % (SRD_WS, SRD_WS+3, S_PF))
    a("s_branch L_p2_b")
    a("L_p2_pm0:")
    a("s_waitcnt vmcnt(0)")
    pm_block(a, True)
    a("s_branch L_p2_ld")
    a("L_p2_pm:")
    a("s_waitcnt vmcnt(0)")
    pm_block(a, False)
    a("L_p2_ld:")
    load_p(a)
    a("L_p2_b:")
    gemm_stage(a, cfg, 2, fill=fill_end)
    a("s_cmp_lg_u32 s%d, 0" % S_CNT)
    a("s_cbranch_scc1 L_p2_c")
    a("s_waitcnt vmcnt(0)")
    a("v_cmp_ne_u32 vcc, s%d, v15" % S_TAG)
    a("s_cbranch_vccnz L_p2_spin")
    a("L_p2_got:")
    load_p(a)
    a("L_p2_c:")
    assert a.q == q0
    a("s_add_u32 s%d, s%d, 1" % (S_CNT, S_CNT))
    a("s_cmp_lg_u32 s%d, 4" % S_CNT)
    a("s_cbranch_scc1 L_p2")
    if cfg.stamp: stamp(a, cfg, 6)
    for k in sorted(fill_top):
        for x in fill_top[k]: a(x)
    a("s_lshl_b32 s%d, s%d, 2" % (S_T0, S_SET))
    a("s_add_u32 s%d, s%d, s%d" % (S_T0, S_T0, S_NT))
    a("s_lshl_b32 s%d, s%d, 9" % (S_PF, S_T0))
    a("s_mul_i32 s%d, s%d, 327680" % (S_T0, S_T0))
    a("s_mul_i32 s%d, s%d, 5120" % (S_T1, S_HG))
    a("s_add_u32 s%d, s%d, s%d" % (S_T0, S_T0, S_T1))
    a("s_mul_i32 s%d, s%d, 81920" % (S_T1, S_W))
    a("s_add_u32 s%d, s%d, s%d" % (S_T0, S_T0, S_T1))
    a("s_add_u32 s%d, s%d, %d" % (S_T0, S_T0, WS_PART))
    a("s_add_u32 s%d, s%d, 4096" % (S_T1, S_T0))
    a("v_bfe_u32 v10, v0, 4, 1")
    a("v_mul_u32_u24 v10, 40960, v10")
    a("v_and_b32 v11, 15, v0")
    a("v_lshrrev_b32 v12, 5, v0")
    a("v_lshl_add_u32 v11, v12, 4, v11")
    a("v_lshl_add_u32 v10, v11, 4, v10")
    a("s_waitcnt vmcnt(0)")
    def out_tile(t):
        base = V_OUT + 16*t
        for j in range(8): a("v_cvt_pk_bf16_f32 v%d, v%d, v%d" % (base+j, base+2*j, base+2*j+1))
        for u in range(2):
            off = (2*t+u)*512
            so = S_T0 if off < 4096 else S_T1
            a("buffer_store_dwordx4 %s, v10, s[%d:%d], s%d offen offset:%d sc1" % (vr(base+4*u, 4), SRD_WS, SRD_WS+3, so, off % 4096))
    for t in range(5):
        for u in range(2):
            mfma(a, V_OUT+16*t, V_VB+8*t+4*u, V_P+4*u, V_OUT+16*t)
        if t == 1: a("s_nop 9")
        if t >= 1: out_tile(t-1)
    a("s_nop 1")
    out_tile(4)
    a("s_lshl_b32 s%d, s%d, 7" % (S_T0, S_W))
    a("s_add_u32 s%d, s%d, s%d" % (S_PF, S_PF, S_T0))
    a("s_add_u32 s%d, s%d, %d" % (S_PF, S_PF, WS_RFLAG))
    a("s_lshl_b32 s%d, s%d, 2" % (S_T0, S_HG))
    a("v_mov_b32 v12, s%d" % S_T0)
    a("s_mov_b64 exec, 1")
    if cfg.stamp: stamp(a, cfg, 7)
    a("s_waitcnt vmcnt(0)")
    a("buffer_store_dword v13, v12, s[%d:%d], s%d offen sc1" % (SRD_WS, SRD_WS+3, S_PF))
    if cfg.stamp:
        a("s_mov_b64 exec, -1")
        stamp(a, cfg, 9); stamp(a, cfg, 8, True); stamp_flush(a, cfg, 0)
    a("s_endpgm")
    a("L_p2_spin:")
    a("s_mov_b32 s%d, %d" % (S_SPIN, SPIN_MAX))
    a("L_p2_spin2:")
    a("buffer_load_dword v15, v14, s[%d:%d], s%d offen sc1" % (SRD_WS, SRD_WS+3, S_PF))
    a("s_sub_u32 s%d, s%d, 1" % (S_SPIN, S_SPIN))
    a("s_cmp_eq_u32 s%d, 0" % S_SPIN)
    a("s_cbranch_scc1 L_p2_got")
    a("s_waitcnt vmcnt(0)")
    a("v_cmp_ne_u32 vcc, s%d, v15" % S_TAG)
    a("s_cbranch_vccnz L_p2_spin2")
    a("s_branch L_p2_got")

def gen_fused(cfg):
    a = Asm(); a.tag = "f"
    fused_prologue(a, cfg)
    fused_loader(a, cfg)
    a("L_exit:"); a("s_endpgm")
    fused_compute(a, cfg)
    hdr = open("cdna_kernels/%s.s.ref" % NAME).read().split("; Override launch")[0]
    out = hdr + "; @launch grid=(256,1,1) block=(512,1,1) lds=%d\n" % LDS
    out += '.amdgcn_target "amdgcn-amd-amdhsa--gfx950"\n.text\n'
    out += kernel_text(NAME + "_kernel", a.text(), 256)
    out += '.section .rodata,"a"\n.p2align 6\n' + kd(NAME + "_kernel", 256)
    return out

if __name__ == "__main__":
    ap = argparse.ArgumentParser()
    ap.add_argument("-o", default="cdna_kernels/%s.s" % NAME)
    ap.add_argument("opts", nargs="*")
    args = ap.parse_args()
    kw = {}
    for o in args.opts:
        k, v = o.split("=")
        kw[k] = int(v) if v.lstrip("-").isdigit() else v
    cfg = Cfg(**kw)
    txt = gen_multi(cfg) if cfg.mode == "multi" else gen_fused(cfg)
    open(args.o, "w").write(txt)
    print("wrote", args.o, len(txt))
```

```python
import re
def _regs(op):
    op = op.strip().lstrip("-")
    m = re.fullmatch(r"v(\d+)", op)
    if m: return {int(m.group(1))}
    m = re.fullmatch(r"v\[(\d+):(\d+)\]", op)
    if m: return set(range(int(m.group(1)), int(m.group(2))+1))
    return set()
def _sregs(op):
    op = op.strip()
    if op == "vcc": return {"vcc"}
    m = re.fullmatch(r"s(\d+)", op)
    if m: return {int(m.group(1))}
    m = re.fullmatch(r"s\[(\d+):(\d+)\]", op)
    if m: return set(range(int(m.group(1)), int(m.group(2))+1))
    return set()
TRANS = ("v_exp_", "v_log_", "v_rcp_", "v_rsq_", "v_sqrt_", "v_sin_", "v_cos_")
class I:
    def __init__(s, text):
        s.text = text
        p = text.split(None, 1); s.m = p[0]
        ops = [o.strip() for o in (p[1].split(",") if len(p) > 1 else [])]
        if ops: ops[-1:] = ops[-1].split()[:1] if not ops[-1].startswith("(") else [ops[-1]]
        s.kind = "other"; s.w = set(); s.r = set(); s.c = set(); s.ab = set(); s.sw = set(); s.sr = set(); s.states = 1
        m = s.m
        if m == "s_nop": s.states = int(ops[0]) + 1
        elif m.startswith("v_mfma"):
            s.kind = "mfma"; s.w = _regs(ops[0]); s.ab = _regs(ops[1]) | _regs(ops[2]); s.c = _regs(ops[3]); s.r = s.ab | s.c
            s.passes = 8 if "32x32" in m else 4
        elif m.startswith("v_"):
            s.kind = "valu"
            if m.startswith("v_permlane"): s.w = _regs(ops[0]) | _regs(ops[1]); s.r = set(s.w)
            else:
                s.w = _regs(ops[0]); s.sw = _sregs(ops[0])
                for o in ops[1:]: s.r |= _regs(o); s.sr |= _sregs(o)
                if m.startswith("v_writelane") or m.startswith("v_fmac"): s.r |= s.w
        elif m.startswith("ds_read"):
            s.kind = "mem"; s.w = _regs(ops[0]); s.r = _regs(ops[1])
        elif m.startswith("ds_write"):
            s.kind = "mem"
            for o in ops: s.r |= _regs(o)
        elif m.startswith("buffer_") or m.startswith("global_"):
            s.kind = "mem"
            if "load" in m and " lds" not in text and "_lds_" not in m:
                s.w = _regs(ops[0])
                for o in ops[1:]: s.r |= _regs(o)
            else:
                for o in ops: s.r |= _regs(o)
            for o in ops: s.sr |= _sregs(o)
            s.wide = "store_dwordx4" in m or "store_dwordx3" in m
            if s.wide: s.data = _regs(ops[0]) if m.startswith("buffer_") else _regs(ops[1])
        elif m.startswith("s_"):
            s.m0w = bool(ops) and ops[0] == "m0"
def need(p, c):
    n = 0
    if p.kind == "mfma":
        big = {8: (12, 10, 7), 4: (8, 6, 3)}[p.passes]
        if c.kind == "mfma":
            if c.ab & p.w: n = max(n, big[0])
            if c.c & p.w and not (c.c == p.w and c.passes == p.passes): n = max(n, big[1])
        elif c.kind in ("valu", "mem"):
            if (c.r | c.w) & p.w: n = max(n, big[0])
            if c.kind == "valu" and c.w & p.c: n = max(n, big[2])
    if p.kind == "valu":
        if c.kind == "mfma" and c.r & p.w: n = max(n, 2)
        if c.kind == "valu":
            if p.m.startswith(TRANS) and not c.m.startswith(TRANS) and c.r & p.w: n = max(n, 1)
            if c.m.startswith("v_permlane") and c.r & p.w: n = max(n, 2)
            if c.m.startswith(("v_readfirstlane", "v_readlane")) and c.r & p.w: n = max(n, 1)
            if c.sr & p.sw: n = max(n, 2)
        if c.kind == "mem" and c.sr & p.sw: n = max(n, 5)
    if p.kind == "mem" and getattr(p, "wide", False) and c.w & p.data: n = max(n, 2)
    if getattr(p, "m0w", False) and c.kind == "mem" and (" lds" in c.text or "_lds_" in c.m): n = max(n, 1)
    return n
class Asm:
    def __init__(self):
        self.l = []; self.q = []; self.h = []; self.pads = []
    def __call__(self, s):
        for x in s.split("\n"):
            x = x.strip()
            if not x: continue
            if x.endswith(":"):
                self.l.append(x); continue
            c = I(x)
            d = 0; pad = 0
            for p in reversed(self.h):
                pad = max(pad, need(p, c) - d)
                d += p.states
                if d >= 20: break
            if pad > 0:
                self.pads.append((x, pad))
                self.l.append("  s_nop %d" % (pad-1)); self.h.append(I("s_nop %d" % (pad-1)))
            self.l.append("  " + x); self.h.append(c); self.h = self.h[-24:]
            if c.m in ("s_branch", "s_endpgm"): self.h = []
    def c(self, s): self.l.append("  ; " + s)
    def text(self): return "\n".join(self.l) + "\n"
    def ds(self, ins, regs):
        if getattr(self, "noread", 0): return
        self(ins)
        self.q.append(set(regs))
        assert len(self.q) <= 15, "too many outstanding lgkm"
    def need(self, regs):
        regs = set(regs); last = -1
        for i, s in enumerate(self.q):
            if s & regs: last = i
        if last >= 0:
            n = len(self.q) - 1 - last
            if not getattr(self, "nowait", 0): self(f"s_waitcnt lgkmcnt({n})")
            self.q = self.q[last+1:]
    def drain(self):
        self("s_waitcnt lgkmcnt(0)")
        self.q = []
def R(a, n): return list(range(a, a+n))
def vr(a, n=1): return f"v{a}" if n == 1 else f"v[{a}:{a+n-1}]"
def sr(a, n=1): return f"s{a}" if n == 1 else f"s[{a}:{a+n-1}]"

def check_paths(text, depth=14):
    lines = [l.strip() for l in text.split("\n")]
    ins = []; labels = {}
    for l in lines:
        if not l or l.startswith(";") or l.startswith("."): continue
        if l.endswith(":"): labels[l[:-1]] = len(ins); continue
        ins.append(I(l))
    succ = []
    for i, x in enumerate(ins):
        t = x.text.split()
        if x.m == "s_endpgm": succ.append([])
        elif x.m == "s_branch": succ.append([labels[t[1]]])
        elif x.m.startswith("s_cbranch"): succ.append([i+1, labels[t[1]]])
        else: succ.append([i+1] if i+1 < len(ins) else [])
    bad = set()
    for i, p in enumerate(ins):
        if p.kind == "other" and not getattr(p, "m0w", False): continue
        stack = [(j, 0) for j in succ[i]]; seen = set()
        while stack:
            j, d = stack.pop()
            if (j, d) in seen or d >= depth or j >= len(ins): continue
            seen.add((j, d))
            if need(p, ins[j]) > d: bad.add((i, j, p.text, ins[j].text, d))
            for k in succ[j]: stack.append((k, d + ins[j].states))
    return sorted(bad)
```

```python
import sys, argparse
sys.path.insert(0, "gen")
from asmlib import *

NAME = "concat_heads__gqa_block_cached__gqa_block_cached__near_ridge"
SLOT, NSLOT = 40960, 4
LDS = SLOT * NSLOT
WS_P, WS_PART, WS_EPOCH, WS_PFLAG, WS_RFLAG = 0, 0x200000, 0x1000000, 0x1010000, 0x1020000
WS_STAMP = 0x4000000
WS_BYTES = 268435456
GOLD = 0x9e3779b9
SPIN_MAX = 200000
OOB = 0x7ff00000

S_W8 = 3
SRD_X, SRD_WQ, SRD_K, SRD_V, SRD_WO, SRD_OUT, SRD_WS = 4, 8, 12, 16, 20, 24, 28
S_TAG, S_SET, S_PF, S_EP = 32, 33, 34, 35
S_P, S_BG, S_H, S_HG, S_NT, S_W, S_OWN, S_HH = 36, 37, 38, 39, 40, 41, 42, 43
S_T0, S_T1, S_T2, S_T3 = 44, 45, 46, 47
S_C, S_BX, S_BW, S_SX, S_SW = 48, 49, 50, 51, 52
S_M4, S_M6, S_MP = 53, 54, 55
S_BKV, S_SV, S_SO, S_SP, S_CF, S_CP, S_HI = 56, 57, 58, 59, 60, 61, 62
S_J, S_ORD = 63, 64
S_CK = 66
S_KB = 69
S_SLOT, S_DELTA, S_CNT, S_PS, S_SC, S_KSLOT = 48, 49, 50, 51, 52, 53
S_SPIN = 70

class Cfg:
    def __init__(s, **kw):
        s.pol = ""; s.bar1 = 1; s.bar2 = 1; s.stamp = 0; s.trace = 0; s.mag = 0
        s.skew = 1; s.crot = 1; s.ktouch = 1; s.cpf = 1; s.la0 = 2; s.laend = 0
        s.nodma = 0; s.noread = 0; s.nowait = 0; s.nomfma = 0; s.kpol = None; s.verbose = 0
        s.__dict__.update(kw)

def stamp(a, cfg, idx, real=False):
    if not cfg.stamp: return
    a("%s s[70:71]" % ("s_memrealtime" if real else "s_memtime"))
    a("s_waitcnt lgkmcnt(0)"); a.q = []
    a("s_mov_b32 s%d, s70" % (90+idx))
def stamp_flush(a, cfg):
    if not cfg.stamp: return
    a("s_mov_b64 exec, -1")
    a("s_lshl_b32 s70, s2, 3"); a("s_add_u32 s70, s70, s%d" % S_W8); a("s_lshl_b32 s70, s70, 6")
    a("s_add_u32 s70, s70, %d" % WS_STAMP)
    for i in range(0, 12, 4):
        for j in range(4): a("v_mov_b32 v%d, s%d" % (12+j, 90+i+j))
        a("buffer_store_dwordx4 v[12:15], off, s[%d:%d], s70 offset:%d" % (SRD_WS, SRD_WS+3, i*4))
        a("s_nop 1")
def trace(a, cfg, lane, real=False):
    if not cfg.trace: return
    a("%s s[70:71]" % ("s_memrealtime" if real else "s_memtime")); a("s_waitcnt lgkmcnt(0)"); a("v_writelane_b32 v200, s70, %d" % lane)
def trace_flush(a, cfg):
    if not cfg.trace: return
    a("s_mov_b64 exec, -1")
    trace(a, cfg, 63, True)
    a("s_lshl_b32 s70, s2, 3"); a("s_add_u32 s70, s70, s%d" % S_W8); a("s_lshl_b32 s70, s70, 8")
    a("s_add_u32 s70, s70, %d" % (WS_STAMP + 0x100000))
    a("v_lshlrev_b32 v10, 2, v0")
    a("buffer_store_dword v200, v10, s[%d:%d], s70 offen" % (SRD_WS, SRD_WS+3))
def mag_start(a, cfg):
    if not cfg.mag: return
    a("s_memrealtime s[70:71]"); a("s_waitcnt lgkmcnt(0)")
    a("s_or_b32 s71, s2, s%d" % S_W8); a("s_cmp_lg_u32 s71, 0"); a("s_cbranch_scc1 L_mags")
    a("v_mov_b32 v11, s70"); a("s_mov_b32 s71, %d" % WS_STAMP)
    a("buffer_store_dword v11, off, s[%d:%d], s71 sc1" % (SRD_WS, SRD_WS+3))
    a("L_mags:")
def mag_end(a, cfg, wave):
    if not cfg.mag: return
    a("s_mov_b64 exec, -1")
    a("s_xor_b32 s71, s%d, %d" % (S_W8, wave)); a("s_or_b32 s71, s2, s71"); a("s_cmp_lg_u32 s71, 0"); a("s_cbranch_scc1 L_mage")
    a("s_mov_b32 s71, %d" % WS_STAMP)
    a("s_waitcnt vmcnt(0)")
    a("s_memrealtime s[72:73]")
    a("buffer_load_dword v11, off, s[%d:%d], s71 sc1" % (SRD_WS, SRD_WS+3))
    a("s_waitcnt vmcnt(0) lgkmcnt(0)")
    a("v_readfirstlane_b32 s74, v11"); a("s_nop 3")
    a("s_sub_u32 s75, s72, s74"); a("s_min_u32 s75, s75, 20000"); a("s_mul_i32 s75, s75, %d" % cfg.mag)
    a("L_magl:")
    a("s_memrealtime s[76:77]"); a("s_waitcnt lgkmcnt(0)")
    a("s_sub_u32 s76, s76, s72"); a("s_cmp_lt_u32 s76, s75"); a("s_cbranch_scc1 L_magl")
    a("L_mage:")

def prologue(a, cfg):
    a("s_cmp_ge_u32 s2, 256")
    a("s_cbranch_scc1 L_exit")
    stamp(a, cfg, 0, True); stamp(a, cfg, 1)
    a("s_and_b32 s%d, s2, 7" % S_T0)
    a("s_lshr_b32 s%d, s%d, 2" % (S_P, S_T0))
    a("s_mul_i32 s%d, s%d, 40" % (S_T1, S_P))
    a("s_load_dwordx8 s[76:83], s[0:1], s%d" % S_T1)
    a("s_load_dwordx2 s[88:89], s[0:1], 96")
    a("s_load_dwordx2 s[84:85], s[0:1], s%d offset:32" % S_T1)
    a("s_load_dwordx2 s[86:87], s[0:1], 80")
    a("v_lshrrev_b32 v1, 6, v0")
    a("v_and_b32 v0, 63, v0")
    a("s_and_b32 s%d, s%d, 3" % (S_T0, S_T0))
    a("v_readfirstlane_b32 s%d, v1" % S_W8)
    a("s_lshr_b32 s%d, s2, 3" % S_T1)
    a("s_and_b32 s%d, s%d, 3" % (S_BG, S_T1))
    a("s_lshr_b32 s%d, s%d, 2" % (S_HH, S_T1))
    a("s_lshl_b32 s%d, s%d, 3" % (S_H, S_T0))
    a("s_add_u32 s%d, s%d, s%d" % (S_H, S_H, S_HH))
    a("s_lshr_b32 s%d, s%d, 2" % (S_HG, S_H))
    a("s_and_b32 s%d, s%d, 3" % (S_OWN, S_HH))
    a("s_sub_u32 s%d, s%d, s%d" % (S_NT, S_OWN, S_BG))
    a("s_and_b32 s%d, s%d, 3" % (S_NT, S_NT))
    a("s_and_b32 s%d, s%d, 3" % (S_W, S_W8))
    a("s_lshl_b32 s%d, s%d, 2" % (S_SET, S_P))
    a("s_add_u32 s%d, s%d, s%d" % (S_SET, S_SET, S_BG))
    a("s_lshl_b32 s%d, s%d, 8" % (S_EP, S_SET))
    a("s_add_u32 s%d, s%d, %d" % (S_EP, S_EP, WS_EPOCH))
    a("s_cmp_lt_u32 s%d, 4" % S_W8)
    a("s_cbranch_scc1 L_compute")

def mk_srd(a, srd, ptr, nb):
    a("s_mov_b32 s%d, s%d" % (srd, ptr))
    a("s_mov_b32 s%d, s%d" % (srd+1, ptr+1))
    a("s_mov_b32 s%d, %d" % (srd+2, nb))
    a("s_mov_b32 s%d, 0x00020000" % (srd+3))

VL_X, VL_V, VL_W, VL_O, VL_P, VL_T, VL_D = 8, 12, 16, 18, 20, 21, 22
ORDERS = [[0,1,4,2,3,5,8,6,7,9], [0,1,2,5,3,4,6,9,7,8], [0,2,1,3,6,4,5,7,8,9], [0,3,1,2,4,7,5,6,8,9]]
KTOUCH = [(4, 8), (5, 9), (6, 8), (7, 9)]

def loader_setup1(a, cfg):
    a("v_lshrrev_b32 v1, 3, v0")
    a("v_and_b32 v2, 7, v0")
    a("v_lshrrev_b32 v3, 1, v1")
    a("v_xor_b32 v4, v2, v3")
    a("v_xor_b32 v5, 4, v4")
    a("v_lshlrev_b32 v4, 4, v4")
    a("v_lshlrev_b32 v5, 4, v5")
    a("v_mul_u32_u24 v6, 1280, v1")
    for i in range(4):
        a("v_add_u32 v%d, v6, v%d" % (VL_X+i, 4 + (i & 1)))
        if i: a("v_add_u32 v%d, %d, v%d" % (VL_X+i, 8*i*1280, VL_X+i))
    a("v_and_b32 v3, 1, v3")
    a("v_lshlrev_b32 v3, 2, v3")
    a("v_xor_b32 v3, v2, v3")
    a("v_lshlrev_b32 v3, 4, v3")
    a("v_mul_u32_u24 v7, 12288, v1")
    a("v_add_u32 v%d, v7, v3" % VL_W)
    a("v_add_u32 v%d, %d, v%d" % (VL_W+1, 8*12288, VL_W))
    a("s_lshl_b32 s%d, s%d, 12" % (S_M4, S_W))
    a("s_mul_i32 s%d, s%d, 6144" % (S_M6, S_W))
    a("s_lshl_b32 s%d, s%d, 2" % (S_T0, S_BG))
    a("s_add_u32 s%d, s%d, s%d" % (S_T0, S_T0, S_W))
    a("s_mul_i32 s%d, s%d, %d" % (S_BX, S_T0, 32*1280))
    a("s_mul_i32 s%d, s%d, %d" % (S_BKV, S_T0, 32*12288))
    a("s_mul_i32 s%d, s%d, %d" % (S_BW, S_W, 16*12288))
    a("s_mul_i32 s%d, s%d, 384" % (S_T0, S_H))
    a("s_add_u32 s%d, s%d, s%d" % (S_BW, S_BW, S_T0))

def loader_setup2(a, cfg):
    a("v_mul_u32_u24 v7, 384, v1")
    for i in range(4):
        a("v_add_u32 v%d, v7, v%d" % (VL_V+i, 4 + (i & 1)))
        if i: a("v_add_u32 v%d, %d, v%d" % (VL_V+i, 8*i*384, VL_V+i))
    a("v_add_u32 v%d, v6, v3" % VL_O)
    a("v_add_u32 v%d, %d, v%d" % (VL_O+1, 8*1280, VL_O))
    a("v_lshrrev_b32 v1, 2, v0")
    a("v_and_b32 v2, 3, v0")
    a("v_mul_u32_u24 v1, 1280, v1")
    a("v_lshlrev_b32 v2, 4, v2")
    a("v_add_u32 v%d, v1, v2" % VL_P)
    a("s_lshl_b32 s%d, s%d, 10" % (S_MP, S_W))
    a("v_lshlrev_b32 v%d, 7, v0" % VL_T)
    a("v_cmp_gt_u32 vcc, 48, v0")
    a("v_mov_b32 v1, 0x%x" % OOB)
    a("s_mul_i32 s%d, s%d, 12288" % (S_KB, S_H))
    a("v_cndmask_b32 v%d, v1, v%d, vcc" % (VL_T, VL_T))
    a("s_add_u32 s%d, s%d, s%d" % (S_KB, S_KB, S_BKV))
    orders = ORDERS if cfg.skew else [list(range(10))]*4
    vals = [sum(c << (4*i) for i, c in enumerate(o[1:])) for o in orders]
    assert all(o[0] == 0 for o in orders)
    a("s_add_u32 s%d, s%d, s%d" % (S_J, S_BG, S_HH))
    a("s_and_b32 s%d, s%d, 3" % (S_J, S_J))
    a("s_mov_b32 s%d, 0x%x" % (S_ORD, vals[0] & 0xffffffff)); a("s_mov_b32 s%d, 0x%x" % (S_ORD+1, vals[0] >> 32))
    for j in range(1, 4):
        a("s_cmp_eq_u32 s%d, %d" % (S_J, j))
        a("s_cselect_b32 s%d, 0x%x, s%d" % (S_ORD, vals[j] & 0xffffffff, S_ORD))
        a("s_cselect_b32 s%d, 0x%x, s%d" % (S_ORD+1, vals[j] >> 32, S_ORD+1))
    if cfg.crot:
        a("s_cmp_eq_u32 s%d, 3" % S_OWN)
        a("s_cselect_b32 s%d, 0, s%d" % (S_CK, S_OWN))
        for k in (1, 2):
            a("s_add_u32 s%d, s%d, 1" % (S_CK+k, S_CK+k-1))
            a("s_cmp_eq_u32 s%d, 3" % (S_CK+k))
            a("s_cselect_b32 s%d, 0, s%d" % (S_CK+k, S_CK+k))
    else:
        for k in range(3): a("s_mov_b32 s%d, %d" % (S_CK+k, k))
    a("s_mul_i32 s%d, s%d, 320" % (S_T0, S_NT))
    a("s_and_b32 s%d, s%d, 1" % (S_T1, S_NT))
    a("s_lshl_b32 s%d, s%d, 6" % (S_T2, S_T1))
    a("s_add_u32 s%d, s%d, s%d" % (S_CF, S_T0, S_T2))
    a("s_xor_b32 s%d, s%d, 1" % (S_T1, S_T1))
    a("s_lshl_b32 s%d, s%d, 8" % (S_T2, S_T1))
    a("s_add_u32 s%d, s%d, s%d" % (S_CP, S_T0, S_T2))
    a("s_mul_i32 s%d, s%d, %d" % (S_T0, S_W, 16*1280))
    a("s_add_u32 s%d, s%d, s%d" % (S_CF, S_CF, S_T0))
    a("s_add_u32 s%d, s%d, s%d" % (S_CP, S_CP, S_T0))

def dma(a, cfg, mbase, mconst, voff, srd, soff, imm=0, pol=None):
    assert mconst - imm >= 0
    if cfg.nodma: return 0
    a("s_add_u32 m0, s%d, %d" % (mbase, mconst - imm))
    a("buffer_load_dwordx4 v%d, s[%d:%d], s%d offen %s%s lds" % (voff, srd, srd+3, soff, ("offset:%d " % imm) if imm else "", cfg.pol if pol is None else pol))
    return 1

def loader_issue(a, cfg, st, pos):
    base = (pos % NSLOT) * SLOT
    n = 0
    if st[0] == "p1":
        if pos == 0:
            sx, sw = S_BX, S_BW
        else:
            a("s_and_b32 s%d, s%d, 15" % (S_C, S_ORD))
            a("s_lshr_b64 s[%d:%d], s[%d:%d], 4" % (S_ORD, S_ORD+1, S_ORD, S_ORD+1))
            a("s_lshl_b32 s%d, s%d, 7" % (S_SX, S_C))
            a("s_add_u32 s%d, s%d, s%d" % (S_SX, S_SX, S_BX))
            a("s_mul_i32 s%d, s%d, %d" % (S_SW, S_C, 64*12288))
            a("s_add_u32 s%d, s%d, s%d" % (S_SW, S_SW, S_BW))
            sx, sw = S_SX, S_SW
        for b in range(2):
            for j in range(3):
                n += dma(a, cfg, S_M6, base + 16384 + b*3072 + j*1024, VL_W+b, SRD_WQ, sw, j*128)
        for i in range(4):
            n += dma(a, cfg, S_M4, base + i*1024, VL_X+i, SRD_X, sx)
        if cfg.ktouch and not cfg.nodma:
            for half in range(2):
                js = [j for j in range(4) if KTOUCH[j][half] == pos]
                if not js: continue
                a("s_mov_b32 s%d, 0x%x" % (S_T0, OOB))
                for j in js:
                    a("s_cmp_eq_u32 s%d, %d" % (S_J, j))
                    a("s_cselect_b32 s%d, s%d, s%d" % (S_T0, S_KB, S_T0))
                if half: a("s_add_u32 s%d, s%d, 6144" % (S_T0, S_T0))
                a("buffer_load_dword v%d, v%d, s[%d:%d], s%d offen" % (VL_D, VL_T, SRD_K, SRD_K+3, S_T0))
                n += 1
    elif st[0] in ("ka", "kb"):
        for m, c in enumerate((0, 1) if st[0] == "ka" else (2,)):
            for i in range(4):
                n += dma(a, cfg, S_M4, base + m*16384 + i*1024, VL_V+i, SRD_K, S_KB, c*128, cfg.kpol)
    else:
        _, hi, k = st
        a("s_lshl_b32 s%d, s%d, 2" % (S_HI, S_HG))
        if hi: a("s_add_u32 s%d, s%d, %d" % (S_HI, S_HI, hi))
        a("s_mul_i32 s%d, s%d, 12288" % (S_SV, S_HI))
        a("s_add_u32 s%d, s%d, s%d" % (S_SV, S_SV, S_BKV))
        a("s_lshl_b32 s%d, s%d, 7" % (S_T0, S_CK+k))
        a("s_add_u32 s%d, s%d, s%d" % (S_SV, S_SV, S_T0))
        a("s_mul_i32 s%d, s%d, 3" % (S_T0, S_HI))
        a("s_add_u32 s%d, s%d, s%d" % (S_T0, S_T0, S_CK+k))
        a("s_mul_i32 s%d, s%d, %d" % (S_T0, S_T0, 64*1280))
        a("s_add_u32 s%d, s%d, s%d" % (S_SO, S_T0, S_CF))
        a("s_add_u32 s%d, s%d, s%d" % (S_SP, S_T0, S_CP))
        for b in range(2):
            for j in range(2):
                n += dma(a, cfg, S_M4, base + 16384 + b*2048 + j*1024, VL_O+b, SRD_WO, S_SO, j*128)
        n += dma(a, cfg, S_MP, base + 32768, VL_P, SRD_WO, S_SP)
        for i in range(4):
            n += dma(a, cfg, S_M4, base + i*1024, VL_V+i, SRD_V, S_SV)
    return n

STAGES = [("p1", i) for i in range(10)] + [("ka",), ("kb",)] + [("p2", i, c) for i in range(4) for c in range(3)]

def loader(a, cfg):
    loader_setup1(a, cfg)
    a("s_waitcnt lgkmcnt(0)")
    mk_srd(a, SRD_WQ, 82, 7864320); mk_srd(a, SRD_X, 76, 655360)
    n = len(STAGES)
    log = []
    def issue(pos): log.append((pos, loader_issue(a, cfg, STAGES[pos], pos)))
    def bar(t):
        k = [p for p, _ in log].index(t)
        a("s_waitcnt vmcnt(%d)" % sum(c for _, c in log[k+1:]))
        trace(a, cfg, 2*t+2); a("s_barrier"); trace(a, cfg, 2*t+3)
    trace(a, cfg, 62, True); trace(a, cfg, 0)
    issue(0)
    trace(a, cfg, 1)
    a("s_load_dword s%d, s[88:89], s%d" % (S_TAG, S_EP))
    loader_setup2(a, cfg)
    mk_srd(a, SRD_K, 78, 6291456); mk_srd(a, SRD_V, 80, 6291456); mk_srd(a, SRD_WO, 84, 7864320)
    mk_srd(a, SRD_OUT, 86, 1310720); mk_srd(a, SRD_WS, 88, WS_BYTES)
    if cfg.cpf:
        a("s_getpc_b64 s[72:73]")
        a("L_pc:")
        a("s_sub_u32 s72, s72, L_pc-%s_kernel" % NAME)
        a("s_subb_u32 s73, s73, 0")
        a("s_lshr_b32 s%d, s2, 3" % S_T0)
        a("s_lshl_b32 s%d, s%d, 1" % (S_T1, S_W))
        a("s_lshl_b32 s%d, s%d, 3" % (S_T0, S_T0))
        a("s_add_u32 s%d, s%d, s%d" % (S_T0, S_T0, S_T1))
        a("v_and_b32 v1, 1, v0")
        a("v_add_u32 v1, s%d, v1" % S_T0)
        a("v_min_u32 v1, (L_end-%s_kernel)/128-1, v1" % NAME)
        a("v_lshlrev_b32 v1, 7, v1")
        a("global_load_dword v%d, v1, s[72:73]" % VL_D)
        log.append((-1, 1))
    a("s_barrier")
    issue(1)
    a("s_waitcnt lgkmcnt(0)")
    a("s_add_u32 s%d, s%d, 0x%x" % (S_TAG, S_TAG, GOLD))
    nxt = 2
    for t in range(n):
        bar(t)
        la = 2 if (t < cfg.la0 or t + 3 >= n - cfg.laend) else 3
        while nxt <= t + la and nxt < n:
            issue(nxt); nxt += 1
    stamp(a, cfg, 2); trace(a, cfg, 52)
    reduce_stage(a, cfg)

def poll(a, label, off, fail):
    a("s_mov_b32 s%d, %d" % (S_SPIN, SPIN_MAX))
    a("%s:" % label)
    a("buffer_load_dword v9, v8, s[%d:%d], s%d offen offset:%d sc1" % (SRD_WS, SRD_WS+3, S_PF, off))
    a("s_sub_u32 s%d, s%d, 1" % (S_SPIN, S_SPIN))
    a("s_cmp_eq_u32 s%d, 0" % S_SPIN)
    a("s_cbranch_scc1 %s" % fail)
    a("s_waitcnt vmcnt(0)")
    a("v_cmp_ne_u32 vcc, s%d, v9" % S_TAG)
    a("s_cbranch_vccnz %s" % label)

def reduce_stage(a, cfg):
    a("s_lshl_b32 s%d, s%d, 2" % (S_T0, S_SET))
    a("s_add_u32 s%d, s%d, s%d" % (S_T0, S_T0, S_NT))
    a("s_lshl_b32 s%d, s%d, 9" % (S_PF, S_T0))
    a("s_lshr_b32 s%d, s%d, 1" % (S_T1, S_HG))
    a("s_lshl_b32 s%d, s%d, 7" % (S_T1, S_T1))
    a("s_add_u32 s%d, s%d, s%d" % (S_PF, S_PF, S_T1))
    a("s_add_u32 s%d, s%d, %d" % (S_PF, S_PF, WS_RFLAG))
    a("s_mul_i32 s%d, s%d, 327680" % (S_T0, S_T0))
    a("s_mul_i32 s%d, s%d, 40960" % (S_T1, S_HG))
    a("s_add_u32 s%d, s%d, s%d" % (S_T0, S_T0, S_T1))
    a("s_add_u32 s%d, s%d, %d" % (S_SX, S_T0, WS_PART))
    a("s_mul_i32 s%d, s%d, 48" % (S_T1, S_W))
    a("v_add_u32 v2, s%d, v0" % S_T1)
    a("s_lshl_b32 s%d, s%d, 5" % (S_T1, S_W))
    a("s_add_u32 s%d, s%d, 192" % (S_T1, S_T1))
    a("v_add_u32 v3, s%d, v0" % S_T1)
    a("s_lshl_b32 s%d, s%d, 3" % (S_T2, S_BG))
    a("s_add_u32 s%d, s%d, s%d" % (S_T2, S_T2, S_HG))
    a("s_mul_i32 s%d, s%d, %d" % (S_T2, S_T2, 16*2560))
    a("s_mul_i32 s%d, s%d, 1280" % (S_T1, S_P))
    a("s_add_u32 s%d, s%d, s%d" % (S_T2, S_T2, S_T1))
    a("s_mul_i32 s%d, s%d, 320" % (S_T1, S_NT))
    a("s_add_u32 s%d, s%d, s%d" % (S_SW, S_T2, S_T1))
    a("s_and_b32 s%d, s%d, 1" % (S_T1, S_NT))
    for k in range(2):
        q, o = 2+k, 4+k
        a("v_lshrrev_b32 v6, 6, v%d" % q)
        a("v_add_u32 v6, s%d, v6" % S_T1)
        a("v_cmp_eq_u32 vcc, 5, v6")
        a("v_and_b32 v7, 15, v%d" % q)
        a("v_mul_u32_u24 v7, 2560, v7")
        a("v_cndmask_b32 v6, v6, 0, vcc")
        a("v_lshl_add_u32 v7, v6, 6, v7")
        a("v_bfe_u32 v6, v%d, 4, 2" % q)
        a("v_lshl_add_u32 v%d, v6, 4, v7" % o)
        a("v_lshlrev_b32 v%d, 4, v%d" % (q, q))
    a("v_and_b32 v8, 7, v0")
    a("v_lshlrev_b32 v8, 2, v8")
    a("s_mov_b32 s%d, 0xffff0000" % S_T3)
    def loads(k):
        a("s_mov_b32 exec_hi, 0x%x" % (0xffff if k == 0 else 0))
        a("s_mov_b32 s%d, s%d" % (S_T0, S_SX))
        for src in range(8):
            a("buffer_load_dwordx4 %s, v%d, s[%d:%d], s%d offen sc1" % (vr(16+32*k+4*src, 4), 2+k, SRD_WS, SRD_WS+3, S_T0))
            if src < 7: a("s_add_u32 s%d, s%d, 5120" % (S_T0, S_T0))
    def summ(k, counted):
        acc = 96 + 8*k
        for src in range(8):
            if counted: a("s_waitcnt vmcnt(%d)" % (7 - src))
            for j in range(4):
                r = 16 + 32*k + 4*src + j
                if src == 0:
                    a("v_lshlrev_b32 v%d, 16, v%d" % (acc+2*j, r))
                    a("v_and_b32 v%d, s%d, v%d" % (acc+2*j+1, S_T3, r))
                else:
                    a("v_lshlrev_b32 v10, 16, v%d" % r)
                    a("v_and_b32 v11, s%d, v%d" % (S_T3, r))
                    a("v_add_f32 v%d, v%d, v10" % (acc+2*j, acc+2*j))
                    a("v_add_f32 v%d, v%d, v11" % (acc+2*j+1, acc+2*j+1))
        for j in range(4): a("v_cvt_pk_bf16_f32 v%d, v%d, v%d" % (112+4*k+j, acc+2*j, acc+2*j+1))
    poll(a, "L_rpoll0", 0, "L_exit")
    stamp(a, cfg, 3); trace(a, cfg, 53)
    loads(0)
    summ(0, True)
    a("buffer_store_dwordx4 v[112:115], v4, s[%d:%d], s%d offen" % (SRD_OUT, SRD_OUT+3, S_SW))
    a("s_mov_b32 exec_hi, -1")
    poll(a, "L_rpoll1", 32, "L_exit")
    stamp(a, cfg, 4); trace(a, cfg, 54)
    loads(1)
    summ(1, True)
    a("buffer_store_dwordx4 v[116:119], v5, s[%d:%d], s%d offen" % (SRD_OUT, SRD_OUT+3, S_SW))
    a("s_or_b32 s%d, s%d, s%d" % (S_T1, S_HG, S_NT))
    a("s_or_b32 s%d, s%d, s%d" % (S_T1, S_T1, S_W))
    a("s_cmp_lg_u32 s%d, 0" % S_T1)
    a("s_cbranch_scc1 L_noep")
    a("s_mov_b64 exec, 1")
    a("v_mov_b32 v9, s%d" % S_TAG)
    a("buffer_store_dword v9, off, s[%d:%d], s%d sc1" % (SRD_WS, SRD_WS+3, S_EP))
    a("L_noep:")
    if cfg.stamp:
        stamp(a, cfg, 6); a("s_waitcnt vmcnt(0)"); stamp(a, cfg, 7); stamp(a, cfg, 8, True); stamp_flush(a, cfg)
    if cfg.trace:
        a("s_waitcnt vmcnt(0)"); trace(a, cfg, 55); trace_flush(a, cfg)
    mag_end(a, cfg, 4)

V_L16, V_AX, V_AE, V_AO, V_A4 = 1, 2, 6, 7, 8
V_T = 9
V_B = 12
V_A = 20
V_PA, V_PB = 40, 48
V_K, V_S, V_Q = 56, 104, 160
V_VW, V_VB, V_OUT = 56, 136, 176
TMP = 120

def compute_setup(a):
    t = TMP
    a("v_and_b32 v%d, 31, v0" % t)
    a("v_lshrrev_b32 v%d, 5, v0" % (t+1))
    a("v_lshrrev_b32 v%d, 1, v%d" % (t+2, t))
    a("v_and_b32 v%d, 7, v%d" % (t+2, t+2))
    a("v_xor_b32 v%d, v%d, v%d" % (t+2, t+2, t+1))
    a("v_lshlrev_b32 v%d, 4, v%d" % (t+2, t+2))
    a("v_lshl_add_u32 v%d, v%d, 7, v%d" % (t+2, t, t+2))
    a("s_lshl_b32 s%d, s%d, 12" % (S_T0, S_W))
    a("v_add_u32 v%d, s%d, v%d" % (V_AX, S_T0, t+2))
    for s in range(1, 4): a("v_xor_b32 v%d, %d, v%d" % (V_AX+s, 32*s, V_AX))
    a("v_lshlrev_b32 v%d, 4, v0" % V_L16)
    a("s_mov_b32 s%d, %d" % (S_KSLOT, SLOT))

def tr_addr(phase):
    t = TMP; l = []
    l.append("v_bfe_u32 v%d, v0, 2, 2" % t)
    l.append("v_bfe_u32 v%d, v0, 4, 1" % (t+1))
    l.append("v_lshrrev_b32 v%d, 5, v0" % (t+2))
    l.append("v_and_b32 v%d, 1, v0" % (t+3))
    l.append("v_bfe_u32 v%d, v0, 1, 1" % (t+4))
    l.append("v_lshl_add_u32 v%d, v%d, 1, v%d" % (t+3, t+3, t+4))
    l.append("v_lshlrev_b32 v%d, 3, v%d" % (t+3, t+3))
    l.append("v_lshl_add_u32 v%d, v%d, 5, v%d" % (t+3, t+1, t+3))
    l.append("v_lshrrev_b32 v%d, 1, v%d" % (t+4, t))
    l.append("v_mul_u32_u24 v%d, %d, v%d" % (t+5, 3072 if phase == 1 else 2048, t+2))
    l.append("v_lshl_add_u32 v%d, v%d, 7, v%d" % (t+5, t, t+5))
    l.append("v_add_u32 v%d, v%d, v%d" % (t+5, t+5, t+3))
    l.append("v_add_u32 v%d, 16384, v%d" % (t+5, t+5))
    l.append("v_lshl_add_u32 v%d, v%d, 6, v%d" % (V_AE, t+4, t+5))
    l.append("v_xor_b32 v%d, 64, v%d" % (V_AO, V_AE))
    if phase == 2:
        l.append("v_lshlrev_b32 v%d, 9, v%d" % (t+5, t+2))
        l.append("v_lshl_add_u32 v%d, v%d, 6, v%d" % (t+5, t, t+5))
        l.append("v_add_u32 v%d, v%d, v%d" % (t+5, t+5, t+3))
        l.append("v_add_u32 v%d, 32768, v%d" % (V_A4, t+5))
    return l

def slot_salu():
    return ["s_add_u32 s%d, s%d, %d" % (S_SLOT, S_SLOT, SLOT), "s_cmp_eq_u32 s%d, %d" % (S_SLOT, LDS),
            "s_cselect_b32 s%d, 0, s%d" % (S_SLOT, S_SLOT), "s_cselect_b32 s%d, %d, s%d" % (S_DELTA, SLOT - LDS, S_KSLOT)]
def adv(r): return "v_add_u32 v%d, s%d, v%d" % (r, S_DELTA, r)

def rd_b(a, s, off=0, dst=None):
    d = V_B + 4*(s & 1) if dst is None else dst
    a.ds("ds_read_b128 %s, v%d offset:%d" % (vr(d, 4), V_AX+s, off), R(d, 4))
def tr_off(phase, s, t, jj):
    if phase == 1: return s*6144 + (t >> 1)*1024 + jj*512
    if t < 4: return s*4096 + (t >> 1)*1024 + jj*512
    return s*1024 + jj*256
def rd_a(a, phase, s, t, dst=None, ad=None):
    d = V_A + 4*t if dst is None else dst
    if ad is None: ad = V_A4 if (phase == 2 and t == 4) else (V_AE, V_AO)[t & 1]
    for jj in range(2):
        a.ds("ds_read_b64_tr_b16 %s, v%d offset:%d" % (vr(d+2*jj, 2), ad, tr_off(phase, s, t, jj)), R(d+2*jj, 2))
def mfma(a, d, x, y, c):
    if getattr(a, "nomfma", 0): return
    a("v_mfma_f32_32x32x16_bf16 %s, %s, %s, %s" % (vr(d, 16), vr(x, 4), vr(y, 4), c if isinstance(c, str) else vr(c, 16)))
def cvt(d, s): return "v_cvt_pk_bf16_f32 v%d, v%d, v%d" % (d, s, s+1)
def cvt_vw(t, src=None): return [cvt(V_VB+8*t+j, (V_VW+16*t if src is None else src)+2*j) for j in range(8)]

def first_reads(a, phase):
    rd_b(a, 0)
    for t in range(6 if phase == 1 else 5): rd_a(a, phase, 0, t)

def gemm_stage(a, cfg, phase, zero_first=False, tail=None, fill=None):
    nt = 6 if phase == 1 else 5
    bar = cfg.bar1 if phase == 1 else cfg.bar2
    f = {(0, 1): slot_salu()[:2], (0, 2): slot_salu()[2:], (0, 3): [adv(V_AX), adv(V_AX+1)], (1, 1): [adv(V_AX+2)], (2, 1): [adv(V_AX+3)],
         (3, 0): [adv(V_AE), adv(V_AO)] + ([adv(V_A4)] if phase == 2 else [])}
    if fill:
        for k, v in fill.items(): f[k] = f.get(k, []) + v
    for s in range(4):
        b = V_B + 4*(s & 1)
        for t in range(nt):
            a.need(R(V_A+4*t, 4) + R(b, 4))
            if phase == 1: mfma(a, V_Q+16*t, V_A+4*t, b, V_Q+16*t)
            else: mfma(a, V_VW+16*t, b, V_A+4*t, "0" if (zero_first and s == 0) else V_VW+16*t)
            if s < 3:
                if t == 0: rd_b(a, s+1)
                rd_a(a, phase, s+1, t)
            pre = f.get((s, t), [])
            if s == 3 and t == bar:
                for x in pre: a(x)
                pre = []
                a.drain()
                a("s_barrier")
                if tail is None:
                    rd_b(a, 0); rd_a(a, phase, 0, 0)
            if s == 3 and t >= bar:
                if tail is not None: tail(t)
                elif t == bar + 1:
                    for tt in range(1, bar+2): rd_a(a, phase, 0, tt)
                elif t > bar + 1: rd_a(a, phase, 0, t)
            for x in pre: a(x)

def softmax(a):
    S, T0, T1 = V_S, V_T, V_T+1
    a("v_max3_f32 v%d, v%d, v%d, v%d" % (T0, S, S+1, S+2))
    a("v_max3_f32 v%d, v%d, v%d, v%d" % (T1, S+3, S+4, S+5))
    for i in range(6, 14, 4):
        a("v_max3_f32 v%d, v%d, v%d, v%d" % (T0, T0, S+i, S+i+1))
        a("v_max3_f32 v%d, v%d, v%d, v%d" % (T1, T1, S+i+2, S+i+3))
    a("v_max3_f32 v%d, v%d, v%d, v%d" % (T0, T0, S+14, S+15))
    a("v_max_f32 v%d, v%d, v%d" % (T0, T0, T1))
    a("v_mov_b32 v%d, v%d" % (T1, T0))
    a("s_nop 1")
    a("v_permlane32_swap_b32 v%d, v%d" % (T0, T1))
    a("v_max_f32 v%d, v%d, v%d" % (T0, T0, T1))
    a("v_mul_f32 v%d, s%d, v%d" % (T0, S_SC, T0))
    for i in range(16): a("v_fma_f32 v%d, v%d, s%d, -v%d" % (S+i, S+i, S_SC, T0))
    for i in range(16): a("v_exp_f32 v%d, v%d" % (S+i, S+i))
    a("v_add_f32 v%d, v%d, v%d" % (T0, S, S+1))
    a("v_add_f32 v%d, v%d, v%d" % (T1, S+2, S+3))
    for i in range(4, 16, 2):
        a("v_add_f32 v%d, v%d, v%d" % (T0, T0, S+i))
        a("v_add_f32 v%d, v%d, v%d" % (T1, T1, S+i+1))
    a("v_add_f32 v%d, v%d, v%d" % (T0, T0, T1))
    a("v_mov_b32 v%d, v%d" % (T1, T0))
    a("s_nop 1")
    a("v_permlane32_swap_b32 v%d, v%d" % (T0, T1))
    a("v_add_f32 v%d, v%d, v%d" % (T0, T0, T1))
    a("v_rcp_f32 v%d, v%d" % (T0, T0))
    a("s_nop 0")
    for i in range(16): a("v_mul_f32 v%d, v%d, v%d" % (S+i, S+i, T0))
    for j in range(8): a(cvt(V_PB+j, S+2*j))

def load_p(a, dst, sreg):
    a("buffer_load_dwordx4 %s, v%d, s[%d:%d], s%d offen sc1" % (vr(dst, 4), V_L16, SRD_WS, SRD_WS+3, sreg))
    a("buffer_load_dwordx4 %s, v%d, s[%d:%d], s%d offen offset:1024 sc1" % (vr(dst+4, 4), V_L16, SRD_WS, SRD_WS+3, sreg))

def pm_cvt_block(a, zero):
    c = [cvt_vw(t) for t in range(5)]
    for t in range(5):
        for u in range(2):
            mfma(a, V_OUT+16*t, V_VB+8*t+4*u, V_PA+4*u, "0" if (zero and u == 0) else V_OUT+16*t)
            if t >= 1:
                for x in c[t-1][4*u:4*u+4]: a(x)

def compute(a, cfg):
    a("L_compute:")
    compute_setup(a)
    for x in tr_addr(1): a(x)
    for r in range(V_Q, V_Q+96): a("v_mov_b32 v%d, 0" % r)
    a("s_waitcnt lgkmcnt(0)")
    a("s_load_dword s%d, s[88:89], s%d" % (S_TAG, S_EP))
    mk_srd(a, SRD_WS, 88, WS_BYTES)
    mag_start(a, cfg)
    a("s_mov_b32 s%d, 0" % S_SLOT)
    a("s_mov_b32 s%d, 9" % S_CNT)
    a("s_mov_b32 s%d, 0x3dd53b95" % S_SC)
    a("s_lshl_b32 s%d, s%d, 2" % (S_T0, S_SET))
    a("s_add_u32 s%d, s%d, s%d" % (S_T0, S_T0, S_W))
    a("s_lshl_b32 s%d, s%d, 3" % (S_T0, S_T0))
    a("s_add_u32 s%d, s%d, s%d" % (S_T0, S_T0, S_HG))
    a("s_lshl_b32 s%d, s%d, 13" % (S_PS, S_T0))
    a("s_lshl_b32 s%d, s%d, 3" % (S_T0, S_SET))
    a("s_add_u32 s%d, s%d, s%d" % (S_T0, S_T0, S_HG))
    a("s_lshl_b32 s%d, s%d, 2" % (S_T0, S_T0))
    a("s_add_u32 s%d, s%d, s%d" % (S_T0, S_T0, S_W))
    a("s_lshl_b32 s%d, s%d, 7" % (S_PF, S_T0))
    a("s_add_u32 s%d, s%d, %d" % (S_PF, S_PF, WS_PFLAG))
    a("s_barrier")
    a("s_waitcnt lgkmcnt(0)")
    a("s_add_u32 s%d, s%d, 0x%x" % (S_TAG, S_TAG, GOLD))
    stamp(a, cfg, 2)
    a("s_barrier")
    stamp(a, cfg, 3)
    first_reads(a, 1)
    q0 = list(a.q)
    a("L_p1:")
    gemm_stage(a, cfg, 1)
    assert a.q == q0
    a("s_sub_u32 s%d, s%d, 1" % (S_CNT, S_CNT))
    a("s_cmp_lg_u32 s%d, 0" % S_CNT)
    a("s_cbranch_scc1 L_p1")
    def ktail(t):
        if t - cfg.bar1 < 4:
            for f in range(2*(t-cfg.bar1), 2*(t-cfg.bar1)+2): rd_b(a, f & 3, (f >> 2)*16384, V_K + 4*f)
    assert cfg.bar1 <= 2
    gemm_stage(a, cfg, 1, tail=ktail)
    stamp(a, cfg, 4)
    for x in slot_salu(): a(x)
    cq = lambda t: [cvt(V_Q+16*t+j, V_Q+16*t+2*j) for j in range(8)]
    for x in cq(0): a(x)
    a.drain()
    a("s_barrier")
    for s in range(4): a(adv(V_AX+s))
    for f in range(8, 12): rd_b(a, f & 3, 0, V_K + 4*f)
    for x in slot_salu(): a(x)
    ta = tr_addr(2)
    for t in range(6):
        if t == 2:
            a.drain()
            a("s_barrier")
        for u in range(2):
            f = 2*t + u
            if u == 0 and t < 5:
                for x in cq(t+1)[:2]: a(x)
            if u == 0 and t == 5: a("s_nop 1")
            mfma(a, V_S, V_K+4*f, V_Q+16*t+4*u, "0" if f == 0 else V_S)
            if t < 5:
                for x in cq(t+1)[2+3*u:5+3*u]: a(x)
            if t == 0 and u == 0: pass
    for s in range(4): a(adv(V_AX+s))
    for x in ta: a(x)
    first_reads(a, 2)
    softmax(a)
    a("s_lshl_b32 s%d, s%d, 11" % (S_T0, S_OWN))
    a("s_add_u32 s%d, s%d, s%d" % (S_T0, S_T0, S_PS))
    a("buffer_store_dwordx4 %s, v%d, s[%d:%d], s%d offen sc1" % (vr(V_PB, 4), V_L16, SRD_WS, SRD_WS+3, S_T0))
    a("buffer_store_dwordx4 %s, v%d, s[%d:%d], s%d offen offset:1024 sc1" % (vr(V_PB+4, 4), V_L16, SRD_WS, SRD_WS+3, S_T0))
    if cfg.stamp: stamp(a, cfg, 5); first_reads(a, 2)
    a("s_mov_b32 s%d, 0" % S_CNT)
    c4 = cvt_vw(4)
    fill_top = {(0, 0): c4[:3], (0, 1): c4[3:5], (0, 2): c4[5:7], (0, 3): c4[7:]}
    q0 = list(a.q)
    a("L_p2:")
    gemm_stage(a, cfg, 2, zero_first=True, fill=fill_top)
    a("s_cmp_lg_u32 s%d, 1" % S_CNT)
    a("s_cbranch_scc1 L_p2_a")
    a("s_waitcnt vmcnt(0)")
    a("v_cmp_ne_u32 vcc, s%d, v%d" % (S_TAG, V_T))
    a("s_cbranch_vccnz L_p2_spin")
    a("L_p2_got:")
    load_p(a, V_PA, S_PS)
    a("s_add_u32 s%d, s%d, 4096" % (S_T0, S_PS))
    load_p(a, V_PB, S_T0)
    a("L_p2_a:")
    gemm_stage(a, cfg, 2)
    a("s_cmp_lg_u32 s%d, 0" % S_CNT)
    a("s_cbranch_scc1 L_p2_b")
    a("s_lshl_b32 s%d, s%d, 2" % (S_T0, S_OWN))
    a("s_add_u32 s%d, s%d, s%d" % (S_T0, S_T0, S_PF))
    a("v_mov_b32 v%d, s%d" % (V_T, S_TAG))
    a("s_waitcnt vmcnt(0)")
    a("s_mov_b64 exec, 1")
    a("buffer_store_dword v%d, off, s[%d:%d], s%d sc1" % (V_T, SRD_WS, SRD_WS+3, S_T0))
    a("s_mov_b64 exec, -1")
    a("L_p2_b:")
    gemm_stage(a, cfg, 2)
    a("s_cmp_eq_u32 s%d, 1" % S_CNT)
    a("s_cbranch_scc1 L_p2_pm0")
    a("s_cmp_eq_u32 s%d, 2" % S_CNT)
    a("s_cbranch_scc1 L_p2_last")
    a("v_lshrrev_b32 v%d, 2, v%d" % (V_T+1, V_L16))
    a("v_and_b32 v%d, 12, v%d" % (V_T+1, V_T+1))
    for t in range(4):
        for x in cvt_vw(t): a(x)
    a("buffer_load_dword v%d, v%d, s[%d:%d], s%d offen sc1" % (V_T, V_T+1, SRD_WS, SRD_WS+3, S_PF))
    a("s_mov_b32 s%d, 1" % S_CNT)
    a("s_branch L_p2")
    a("L_p2_pm0:")
    a("s_waitcnt vmcnt(2)")
    pm_cvt_block(a, True)
    a("s_add_u32 s%d, s%d, 2048" % (S_T0, S_PS))
    load_p(a, V_PA, S_T0)
    a("s_mov_b32 s%d, 2" % S_CNT)
    assert a.q == q0
    a("s_branch L_p2")
    a("L_p2_spin:")
    a("s_mov_b32 s%d, %d" % (S_SPIN, SPIN_MAX))
    a("L_p2_spin2:")
    a("buffer_load_dword v%d, v%d, s[%d:%d], s%d offen sc1" % (V_T, V_T+1, SRD_WS, SRD_WS+3, S_PF))
    a("s_sub_u32 s%d, s%d, 1" % (S_SPIN, S_SPIN))
    a("s_cmp_eq_u32 s%d, 0" % S_SPIN)
    a("s_cbranch_scc1 L_p2_got")
    a("s_waitcnt vmcnt(0)")
    a("v_cmp_ne_u32 vcc, s%d, v%d" % (S_TAG, V_T))
    a("s_cbranch_vccnz L_p2_spin2")
    a("s_branch L_p2_got")
    a("L_p2_last:")
    stamp(a, cfg, 6)
    last_head(a, cfg)

def last_head(a, cfg):
    a("s_waitcnt vmcnt(0)")
    pm_cvt_block(a, False)
    a("s_add_u32 s%d, s%d, 6144" % (S_T0, S_PS))
    load_p(a, V_PA, S_T0)
    for x in cvt_vw(4): a(x)
    a.drain()
    VF = V_VW + 32
    AD = V_B
    def vreads(c):
        for s in range(4):
            a.ds("ds_read_b128 %s, v%d offset:%d" % (vr(VF+16*c+4*s, 4), V_AX+s, SLOT if c == 1 else 0), R(VF+16*c+4*s, 4))
    def addr(t):
        src = V_A4 if t == 4 else (V_AE, V_AO)[t & 1]
        d = AD + 3*(t & 1)
        return ["v_mov_b32 v%d, v%d" % (d, src), "v_add_u32 v%d, %d, v%d" % (d+1, SLOT, src), "v_add_u32 v%d, %d, v%d" % (d+2, 2*SLOT, src)]
    def wread(m):
        t, k = divmod(m, 12)
        rd_a(a, 2, k & 3, t, dst=V_A + 4*(m % 5), ad=AD + 3*(t & 1) + (k >> 2))
    for x in addr(0): a(x)
    vreads(0)
    for m in range(4): wread(m)
    sal = ["s_lshl_b32 s%d, s%d, 2" % (S_T0, S_SET), "s_add_u32 s%d, s%d, s%d" % (S_T0, S_T0, S_NT),
           "s_lshl_b32 s%d, s%d, 9" % (S_PF, S_T0), "s_mul_i32 s%d, s%d, 327680" % (S_T0, S_T0),
           "s_mul_i32 s%d, s%d, 5120" % (S_T1, S_HG), "s_add_u32 s%d, s%d, s%d" % (S_T0, S_T0, S_T1),
           "s_mul_i32 s%d, s%d, 81920" % (S_T1, S_W), "s_add_u32 s%d, s%d, s%d" % (S_T0, S_T0, S_T1),
           "s_add_u32 s%d, s%d, %d" % (S_T0, S_T0, WS_PART), "s_add_u32 s%d, s%d, 4096" % (S_T1, S_T0),
           "s_lshl_b32 s%d, s%d, 7" % (S_T2, S_W), "s_add_u32 s%d, s%d, s%d" % (S_PF, S_PF, S_T2),
           "s_lshl_b32 s%d, s%d, 2" % (S_T2, S_HG), "s_add_u32 s%d, s%d, s%d" % (S_PF, S_PF, S_T2),
           "s_add_u32 s%d, s%d, %d" % (S_PF, S_PF, WS_RFLAG)]
    T = V_T
    val = ["v_bfe_u32 v%d, v0, 4, 1" % T, "v_mul_u32_u24 v%d, 40960, v%d" % (T, T), "v_and_b32 v%d, 15, v0" % (T+1),
           "v_lshrrev_b32 v%d, 5, v0" % (T+2), "v_lshl_add_u32 v%d, v%d, 4, v%d" % (T+1, T+2, T+1),
           "v_lshl_add_u32 v%d, v%d, 4, v%d" % (T, T+1, T), "v_mov_b32 v%d, s%d" % (T+1, S_TAG)]
    misc = sal + val
    for t in range(5):
        for u in range(2):
            mfma(a, V_OUT+16*t, V_VB+8*t+4*u, V_PB+4*u, V_OUT+16*t)
            for x in misc[:3]: a(x)
            misc = misc[3:]
    assert not misc
    def store(t, u):
        off = (2*t+u)*512
        return "buffer_store_dwordx4 %s, v%d, s[%d:%d], s%d offen offset:%d sc1" % (vr(V_OUT+16*t+4*u, 4), T, SRD_WS, SRD_WS+3, S_T0 if off < 4096 else S_T1, off % 4096)
    def co(t): return [cvt(V_OUT+16*t+j, V_OUT+16*t+2*j) for j in range(8)]
    a.drain()
    a("s_barrier")
    vreads(1)
    wread(4)
    nread = 5
    for m in range(60):
        t, k = divmod(m, 12)
        vw = V_VW + 16*(t & 1)
        a.need(R(V_A+4*(m % 5), 4) + R(VF+4*k, 4))
        mfma(a, vw, VF+4*k, V_A+4*(m % 5), "0" if k == 0 else vw)
        if m == 2:
            a("s_barrier")
            for s in range(4): a("v_add_u32 v%d, %d, v%d" % (V_AX+s, 2*SLOT, V_AX+s))
        if m == 4: vreads(2)
        if m + 5 < 60: wread(m + 5)
        if k == 4 and t < 4:
            for x in addr(t+1): a(x)
        if t >= 1:
            p = t - 1
            cv = cvt_vw(p, V_VW + 16*(p & 1))
            if k == 2:
                for x in cv[:3]: a(x)
            if k == 3:
                for x in cv[3:6]: a(x)
            if k == 4:
                for x in cv[6:]: a(x)
            if k == 5:
                if p == 0: a("s_waitcnt vmcnt(0)")
                for u in range(2): mfma(a, V_OUT+16*p, V_VB+8*p+4*u, V_PA+4*u, V_OUT+16*p)
            if k == 9:
                for x in co(p)[:3]: a(x)
            if k == 10:
                for x in co(p)[3:6]: a(x)
            if k == 11:
                for x in co(p)[6:]: a(x)
                a(store(p, 0)); a(store(p, 1))
    for x in cvt_vw(4, V_VW): a(x)
    for u in range(2): mfma(a, V_OUT+64, V_VB+32+4*u, V_PA+4*u, V_OUT+64)
    for x in co(4)[:4]: a(x)
    a(store(4, 0))
    for x in co(4)[4:]: a(x)
    a(store(4, 1))
    stamp(a, cfg, 7)
    a("s_mov_b64 exec, 1")
    a("s_waitcnt vmcnt(4)")
    a("buffer_store_dword v%d, off, s[%d:%d], s%d sc1" % (T+1, SRD_WS, SRD_WS+3, S_PF))
    a("s_waitcnt vmcnt(1)")
    a("buffer_store_dword v%d, off, s[%d:%d], s%d offset:32 sc1" % (T+1, SRD_WS, SRD_WS+3, S_PF))
    if cfg.stamp:
        stamp(a, cfg, 9); stamp(a, cfg, 8, True); stamp_flush(a, cfg)
    a("s_endpgm")

def generate(cfg):
    a = Asm(); a.noread = cfg.noread; a.nowait = cfg.nowait; a.nomfma = cfg.nomfma
    prologue(a, cfg)
    loader(a, cfg)
    a("L_exit:"); a("s_endpgm")
    compute(a, cfg)
    a("L_end:")
    bad = check_paths(a.text())
    assert not bad, bad
    if cfg.verbose:
        for x in a.pads:
            if "lds" not in x[0]: print("pad", x)
    hdr = open("cdna_kernels/%s.s.ref" % NAME).read().split("; Override launch")[0]
    k = NAME + "_kernel"
    out = hdr + "; @launch grid=(256,1,1) block=(512,1,1) lds=%d\n" % LDS
    out += '.amdgcn_target "amdgcn-amd-amdhsa--gfx950"\n.text\n.globl %s\n.p2align 8\n.type %s,@function\n%s:\n' % (k, k, k)
    out += a.text()
    out += """.section .rodata,"a"
.p2align 6
.amdhsa_kernel %s
  .amdhsa_next_free_vgpr 256
  .amdhsa_next_free_sgpr 102
  .amdhsa_accum_offset 256
  .amdhsa_group_segment_fixed_size 0
  .amdhsa_kernarg_size 104
  .amdhsa_user_sgpr_count 2
  .amdhsa_user_sgpr_kernarg_segment_ptr 1
  .amdhsa_system_sgpr_workgroup_id_x 1
.end_amdhsa_kernel
""" % k
    return out

if __name__ == "__main__":
    ap = argparse.ArgumentParser()
    ap.add_argument("-o", default="cdna_kernels/%s.s" % NAME)
    ap.add_argument("opts", nargs="*")
    args = ap.parse_args()
    kw = {}
    for o in args.opts:
        k, v = o.split("=")
        kw[k] = int(v) if v.lstrip("-").isdigit() else v
    txt = generate(Cfg(**kw))
    open(args.o, "w").write(txt)
    print("wrote", args.o, len(txt))
```
